```python
import torch

def _softmax(x, axis=-1):
    return torch.softmax(x, dim=axis)

def _gelu(x):
    return torch.nn.functional.gelu(x, approximate='tanh')

def _silu(x):
    return torch.nn.functional.silu(x)

def _sigmoid(x):
    return torch.sigmoid(x)

def _layernorm(x, axis=-1, eps=1e-05):
    m = x.mean(dim=axis, keepdim=True)
    v = x.var(dim=axis, keepdim=True, unbiased=False)
    return (x - m) / torch.sqrt(v + eps)

def _scatter_add(tgt, idx, src, axis=0):
    return tgt.clone().index_add_(axis, idx, src)

def _segment_sum(src, seg, n):
    out = torch.zeros((n,) + src.shape[1:], dtype=src.dtype)
    return out.index_add_(0, seg, src)

def _pad(x, pw):
    flat = tuple((v for pair in reversed(pw) for v in pair))
    return torch.nn.functional.pad(x, flat)
kernel_name = 'adaLN_cond__sliding_block_cached__swiglu_ffn__prompt'

def setup_inputs():

    _w = lambda a: (lambda t: t.to(torch.bfloat16) if t.is_floating_point() else t)(torch.as_tensor(a))

    def _A_setup():
        B, Sq, D = (1, 2048, 640)
        Hq, Hkv, Sk, Dh = (32, 32, 2048, 128)
        assert Hq % Hkv == 0, (Hq, Hkv)
        return {'x': _w((lambda *s: torch.randn(*s, dtype=torch.bfloat16) * 0.05)(B, Sq, D)), 'k_cache': _w((lambda *s: torch.randn(*s, dtype=torch.bfloat16) * 3.2)(B, Hkv, Sk, Dh)), 'v_cache': _w((lambda *s: torch.randn(*s, dtype=torch.bfloat16) * 0.4)(B, Hkv, Sk, Dh)), 'wq': _w((lambda *s: torch.randn(*s, dtype=torch.bfloat16) * 3.2)(D, Hq * Dh) * D ** (-0.5)), 'wo': _w((lambda *s: torch.randn(*s, dtype=torch.bfloat16) * 0.4)(Hq * Dh, D) * (Hq * Dh) ** (-0.5))}
    _A_in = _A_setup()

    def _B_setup():
        B, S, D, F = (1, 2048, 640, 1728)
        return {'x': _w((lambda *s: torch.randn(*s, dtype=torch.bfloat16) * 0.05)(B, S, D)), 'w_gate': _w((lambda *s: torch.randn(*s, dtype=torch.bfloat16) * 0.05)(D, F)), 'w_up': _w((lambda *s: torch.randn(*s, dtype=torch.bfloat16) * 0.05)(D, F)), 'w_down': _w((lambda *s: torch.randn(*s, dtype=torch.bfloat16) * 0.05)(F, D))}
    _B_in = _B_setup()
    return {'A_x': _A_in['x'], 'A_k_cache': _A_in['k_cache'], 'A_v_cache': _A_in['v_cache'], 'A_wq': _A_in['wq'], 'A_wo': _A_in['wo'], 'B_x': _B_in['x'], 'B_w_gate': _B_in['w_gate'], 'B_w_up': _B_in['w_up'], 'B_w_down': _B_in['w_down'], 'c': _w((lambda *s: torch.randn(*s, dtype=torch.bfloat16) * 0.1)(1, 640) * 8.0), 'w_mod': _w((lambda *s: torch.randn(*s, dtype=torch.bfloat16) * 0.1)(640, 6 * 640) * 640 ** (-0.5) * 8.0)}

def reference(A_x, A_k_cache, A_v_cache, A_wq, A_wo, B_x, B_w_gate, B_w_up, B_w_down, c, w_mod):

    def _A_ref(x, k_cache, v_cache, wq, wo):
        B, Sq, D = x.shape
        Hq, Dh = (32, 128)
        Hkv, Sk = (k_cache.shape[1], k_cache.shape[2])
        W = min(4096, max(256, Sk // 4))
        rep = Hq // Hkv
        q = (lambda x, *d: x.permute(*d))((x @ wq).reshape(B, Sq, Hq, Dh), 0, 2, 1, 3)
        k = (lambda x, n, axis: torch.repeat_interleave(x, n, dim=axis))(k_cache[:, :, Sk - W:, :], rep, axis=1)
        v = (lambda x, n, axis: torch.repeat_interleave(x, n, dim=axis))(v_cache[:, :, Sk - W:, :], rep, axis=1)
        scores = torch.einsum('bhqd,bhkd->bhqk', q, k) * Dh ** (-0.5)
        p = _softmax(scores, axis=-1)
        o = torch.einsum('bhqk,bhkd->bhqd', p, v)
        return (lambda x, *d: x.permute(*d))(o, 0, 2, 1, 3).reshape(B, Sq, Hq * Dh) @ wo

    def _B_ref(x, w_gate, w_up, w_down):
        g = _silu(x @ w_gate)
        u = x @ w_up
        return g * u @ w_down
    x = A_x
    mod = (_silu(c) @ w_mod).reshape(c.shape[0], 6, 1, -1)
    sa, ca, ga, sb, cb, gb = (mod[:, 0].clone(), mod[:, 1].clone(), mod[:, 2].clone(), mod[:, 3].clone(), mod[:, 4].clone(), mod[:, 5].clone())
    h = _layernorm(x, axis=-1) * (1 + ca) + sa
    x = x + ga * _A_ref(h, A_k_cache, A_v_cache, A_wq, A_wo)
    h = _layernorm(x, axis=-1) * (1 + cb) + sb
    x = x + gb * _B_ref(h, B_w_gate, B_w_up, B_w_down)
    return x
```

```python
import re


class Reg:
    __slots__ = ("k", "i", "n")

    def __init__(self, k, i, n=1):
        self.k, self.i, self.n = k, i, n

    def __str__(self):
        if self.n == 1:
            return f"{self.k}{self.i}"
        return f"{self.k}[{self.i}:{self.i + self.n - 1}]"

    __repr__ = __str__

    def regs(self):
        return {(self.k, self.i + j) for j in range(self.n)}

    def __getitem__(self, x):
        if isinstance(x, slice):
            a = x.start or 0
            b = self.n if x.stop is None else x.stop
            assert 0 <= a < b <= self.n, (self, x)
            return Reg(self.k, self.i + a, b - a)
        assert 0 <= x < self.n, (self, x)
        return Reg(self.k, self.i + x, 1)


class Mod:
    def __init__(self, r, fmt):
        self.r, self.fmt = r, fmt

    def __str__(self):
        return self.fmt % str(self.r)

    def regs(self):
        return self.r.regs()


def neg(r):
    return Mod(r, "-%s")


def v(i, n=1):
    return Reg("v", i, n)


def s(i, n=1):
    return Reg("s", i, n)


def a(i, n=1):
    return Reg("a", i, n)


SPECIAL = {
    "vcc": {("vcc", 0)},
    "exec": {("exec", 0)},
    "m0": {("m0", 0)},
    "exec_lo": {("exec", 0)},
    "exec_hi": {("exec", 0)},
    "vcc_lo": {("vcc", 0)},
    "vcc_hi": {("vcc", 0)},
}

TRANS = ("v_exp_", "v_log_", "v_rcp_", "v_rsq_", "v_sqrt_", "v_sin_", "v_cos_")


def opregs(o):
    if isinstance(o, (Reg, Mod)):
        return o.regs()
    if isinstance(o, str) and o in SPECIAL:
        return set(SPECIAL[o])
    return set()


class Instr:
    def __init__(self, op, ops, mods="", tag=None, comment=""):
        self.op, self.ops, self.mods, self.tag, self.comment = op, list(ops), mods, tag, comment
        self.req_vm = None
        self.req_lgkm = None
        self.vm_seen = set()
        self.lg_seen = set()
        self.pre_nops = 0
        self.classify()

    def classify(self):
        op = self.op
        ops = self.ops
        self.is_mfma = op.startswith("v_mfma")
        self.is_valu = op.startswith("v_") and not self.is_mfma
        self.is_trans = op.startswith(TRANS)
        self.is_ds = op.startswith("ds_")
        self.is_lds_dma = (op.startswith("buffer_load") and " lds" in (" " + self.mods)) or op.startswith(
            "global_load_lds")
        self.is_vmem = op.startswith(("buffer_", "global_")) and not op.startswith(("buffer_inv", "buffer_wbl2"))
        self.is_smem = op.startswith(("s_load", "s_buffer_load", "s_memtime", "s_memrealtime"))
        self.is_store = self.is_vmem and ("store" in op or "atomic" in op)
        self.is_salu = op.startswith("s_") and not self.is_smem
        self.is_perm = op.startswith("v_permlane")
        self.is_dpp = "_dpp" in op or "row_" in self.mods or "quad_perm" in self.mods
        self.passes = 0
        if self.is_mfma:
            self.passes = 8 if "32x32x16" in op else 4 if "16x16x32" in op else None
            assert self.passes
        w, r = set(), set()
        nd = 1
        if op in ("s_waitcnt", "s_barrier", "s_nop", "s_branch", "s_endpgm", "s_setprio", "s_sleep", "need",
                  "buffer_inv", "buffer_wbl2") or op.startswith("s_cbranch"):
            nd = 0
            if op.startswith("s_cbranch_vcc"):
                r |= {("vcc", 0)}
            if op.startswith("s_cbranch_exec"):
                r |= {("exec", 0)}
        elif op.startswith("s_cmp") or op.startswith("s_bitcmp"):
            nd = 0
        elif op.startswith("ds_write") or self.is_store or self.is_lds_dma:
            nd = 0
            if self.is_lds_dma:
                r |= {("m0", 0)}
        elif op.startswith(("v_add_co", "v_sub_co", "v_addc_co", "v_subb_co", "v_subrev_co", "v_div_scale",
                            "v_mad_u64")):
            nd = 2
        for o in ops[:nd]:
            w |= opregs(o)
        for o in ops[nd:]:
            r |= opregs(o)
        if op.startswith(("v_fmac", "v_dot2c", "v_pk_fmac", "v_writelane", "s_addk", "s_mulk")):
            r |= opregs(ops[0])
        if self.is_dpp or "sdwa" in op:
            r |= opregs(ops[0])
        if op.startswith(("v_permlane16_swap", "v_permlane32_swap")):
            w |= opregs(ops[1])
            r |= opregs(ops[0])
        if op.endswith("saveexec_b64"):
            w |= {("exec", 0)}
            r |= {("exec", 0)}
        if op.startswith("v_cmpx"):
            w |= {("exec", 0)}
        self.w, self.r = w, r
        self.wide_store = self.is_store and ("x4" in op or "x3" in op)
        if self.wide_store:
            d = ops[0] if op.startswith("buffer") else ops[1]
            self.store_data = opregs(d)

    def text(self):
        if self.op == "need":
            return None
        t = self.op
        if self.ops:
            t += " " + ", ".join(str(o) for o in self.ops)
        if self.mods:
            t += " " + self.mods
        if self.comment:
            t += "   ; " + self.comment
        return t

    def states(self):
        if self.op == "s_nop":
            return int(self.ops[0]) + 1
        if self.op == "need":
            return 0
        return 1


class Label:
    def __init__(self, name):
        self.name = name


class Loop:
    def __init__(self, count):
        self.count = count
        self.body = []


class If:
    def __init__(self, cond):
        self.cond = cond
        self.body = []


class Cold:
    def __init__(self):
        self.body = []


class Kernel:
    def __init__(self, name, scenarios=None):
        self.name = name
        self.root = []
        self.stack = [self.root]
        self.scenarios = scenarios or [{}]
        self.colds = []
        self.nlabel = 0
        self.vgpr = 256
        self.sgpr = 102
        self.accum = 256
        self.report = []

    def emit(self, x):
        self.stack[-1].append(x)
        return x

    def op(self, op, *ops, mods="", tag=None, comment=""):
        return self.emit(Instr(op, ops, mods, tag, comment))

    def __getattr__(self, name):
        if name.startswith(("v_", "s_", "ds_", "buffer_", "global_")):
            def f(*ops, mods="", tag=None, comment=""):
                return self.op(name, *ops, mods=mods, tag=tag, comment=comment)
            return f
        raise AttributeError(name)

    def label(self, name=None):
        if name is None:
            name = self.newlabel()
        self.emit(Label(name))
        return name

    def newlabel(self, base="L"):
        self.nlabel += 1
        return f"{base}_{self.name}_{self.nlabel}"

    def need(self, *tags):
        i = Instr("need", [])
        i.need_tags = set(tags)
        return self.emit(i)

    def push(self, node):
        self.emit(node)
        self.stack.append(node.body)
        return node

    def pop(self):
        self.stack.pop()

    def cold(self):
        c = Cold()
        self.colds.append(c)
        self.stack.append(c.body)
        return c

    def waitcnt(self, vm=None, lgkm=None):
        i = Instr("s_waitcnt", [])
        parts = []
        if vm is not None:
            parts.append(f"vmcnt({vm})")
        if lgkm is not None:
            parts.append(f"lgkmcnt({lgkm})")
        i.mods = " ".join(parts)
        i.x_vm, i.x_lgkm = vm, lgkm
        return self.emit(i)

    def nop(self, n):
        while n > 0:
            m = min(n, 16)
            self.op("s_nop", m - 1)
            n -= m

    def trace(self, nodes, sc, out):
        for x in nodes:
            if isinstance(x, Instr):
                out.append(x)
            elif isinstance(x, Loop):
                c = x.count(sc) if callable(x.count) else x.count
                for _ in range(c):
                    self.trace(x.body, sc, out)
            elif isinstance(x, If):
                if x.cond(sc):
                    self.trace(x.body, sc, out)
        return out

    def wait_pass(self, tr):
        vmq, lgq = [], []
        for ins in tr:
            if ins.op == "s_waitcnt":
                if ins.x_vm is not None:
                    del vmq[: max(0, len(vmq) - ins.x_vm)]
                if ins.x_lgkm is not None:
                    del lgq[: max(0, len(lgq) - ins.x_lgkm)]
                continue
            touched = ins.r | ins.w
            need = None
            tags = getattr(ins, "need_tags", None)
            for idx, (regs, tag, _k) in enumerate(vmq):
                if (regs & touched) or (tags and tag in tags):
                    need = len(vmq) - 1 - idx
            if need is not None:
                need = min(need, 63)
                ins.vm_seen.add(need)
                ins.req_vm = need if ins.req_vm is None else min(ins.req_vm, need)
                del vmq[: len(vmq) - need]
            need = None
            for idx, (regs, tag, _k) in enumerate(lgq):
                if regs & touched:
                    need = len(lgq) - 1 - idx
            if need is not None:
                if any(k == "smem" for _, _, k in lgq):
                    need = 0
                need = min(need, 15)
                ins.lg_seen.add(need)
                ins.req_lgkm = need if ins.req_lgkm is None else min(ins.req_lgkm, need)
                del lgq[: len(lgq) - need]
            if ins.is_vmem:
                vmq.append((set(ins.w), ins.tag, "vm"))
            elif ins.is_ds:
                lgq.append((set(ins.w), ins.tag, "ds"))
            elif ins.is_smem:
                lgq.append((set(ins.w), ins.tag, "smem"))

    def hazard_pass(self, tr):
        changed = False
        hist = []
        pos = 0
        for ins in tr:
            if ins.op == "need":
                if ins.req_vm is not None:
                    pos += 1
                continue
            extra = ins.pre_nops + (1 if (ins.req_vm is not None or ins.req_lgkm is not None) else 0)
            here = pos + extra
            req = 0
            for (p, pr) in reversed(hist):
                d = here - p
                if d >= 20:
                    break
                n = self.required(pr, ins)
                if n > d:
                    req = max(req, n - d)
            if req:
                ins.pre_nops += req
                here += req
                changed = True
            pos = here + ins.states()
            hist.append((pos if ins.op != "s_nop" else pos, ins))
            if len(hist) > 40:
                del hist[:10]
        return changed

    @staticmethod
    def required(p, c):
        n = 0
        vw = {x for x in p.w if x[0] in "va"}
        sw = {x for x in p.w if x[0] in ("s", "vcc")}
        if p.is_mfma:
            D = p.w
            big = {8: 12, 4: 8}[p.passes]
            if c.is_mfma:
                ab = opregs(c.ops[1]) | opregs(c.ops[2])
                cc = opregs(c.ops[3])
                if D & ab:
                    n = max(n, big)
                if D & cc and not (cc == D and c.passes == p.passes):
                    n = max(n, {8: 10, 4: 6}[p.passes])
            elif (c.is_valu or c.is_vmem or c.is_ds) and (D & (c.r | c.w)):
                n = max(n, big)
            pc = opregs(p.ops[3])
            if c.is_valu and (pc & c.w):
                n = max(n, {8: 7, 4: 3}[p.passes])
        elif p.is_valu:
            if c.is_mfma and (vw & c.r):
                n = max(n, 2)
            if p.is_trans and c.is_valu and not c.is_trans and (vw & c.r):
                n = max(n, 1)
            if p.is_trans and (c.is_vmem or c.is_ds) and (vw & c.r):
                n = max(n, 1)
            if (c.is_perm or c.is_dpp) and (vw & c.r):
                n = max(n, 2)
            if c.op.startswith(("v_readlane", "v_readfirstlane")) and (vw & c.r):
                n = max(n, 1)
            if c.is_valu and (sw & c.r):
                n = max(n, 4 if c.op.startswith(("v_readlane", "v_writelane", "v_div_fmas")) else 2)
            if c.is_vmem and (sw & c.r):
                n = max(n, 5)
            if c.is_salu and (sw & c.r) and not c.op.startswith("s_cbranch"):
                n = max(n, 1)
            if ("exec", 0) in p.w:
                if c.is_dpp:
                    n = max(n, 5)
                elif c.is_mfma or c.is_perm or c.op.startswith(("v_readlane", "v_readfirstlane", "v_writelane")):
                    n = max(n, 4)
            if ("op_sel" in p.mods or "sdwa" in p.op) and c.is_valu and (vw & (c.r | c.w)) and not p.op.startswith(
                    "v_fma_mix_f32") and "dst_sel:DWORD" not in p.mods:
                n = max(n, 1)
        elif p.is_salu:
            if ("m0", 0) in p.w and c.is_lds_dma:
                n = max(n, 1)
        if p.wide_store and (p.store_data & c.w):
            n = max(n, 2 if c.is_valu else 1)
        return n

    def finalize(self):
        traces = [self.trace(self.root, sc, []) for sc in self.scenarios]
        traces += [self.trace(c.body, {}, []) for c in self.colds]
        for tr in traces:
            self.wait_pass(tr)
        for _ in range(20):
            ch = False
            for tr in traces:
                ch |= self.hazard_pass(tr)
            if not ch:
                break
        else:
            raise RuntimeError("hazard pass did not converge")
        self.ntrace = [len(t) for t in traces]

    def lines(self, nodes, out):
        for x in nodes:
            if isinstance(x, Instr):
                parts = []
                if x.req_vm is not None:
                    parts.append(f"vmcnt({x.req_vm})")
                if x.req_lgkm is not None:
                    parts.append(f"lgkmcnt({x.req_lgkm})")
                n = x.pre_nops
                while n > 0:
                    m = min(n, 16)
                    out.append(f"    s_nop {m - 1}")
                    n -= m
                if parts:
                    c = ""
                    if len(x.vm_seen) > 1 or len(x.lg_seen) > 1:
                        c = f"   ; varies vm={sorted(x.vm_seen)} lg={sorted(x.lg_seen)}"
                    out.append("    s_waitcnt " + " ".join(parts) + c)
                t = x.text()
                if t:
                    out.append("    " + t)
            elif isinstance(x, Label):
                out.append(f"{x.name}:")
            else:
                self.lines(x.body, out)
        return out

    def text(self):
        self.finalize()
        out = [f".globl {self.name}", ".p2align 8", f".type {self.name},@function", f"{self.name}:"]
        self.lines(self.root, out)
        for c in self.colds:
            self.lines(c.body, out)
        return "\n".join(out) + "\n"

    def descriptor(self):
        return (f".p2align 6\n.amdhsa_kernel {self.name}\n"
                f"  .amdhsa_next_free_vgpr {self.vgpr}\n"
                f"  .amdhsa_next_free_sgpr {self.sgpr}\n"
                f"  .amdhsa_accum_offset {self.accum}\n"
                f"  .amdhsa_group_segment_fixed_size 0\n"
                f"  .amdhsa_kernarg_size 112\n"
                f"  .amdhsa_user_sgpr_count 2\n"
                f"  .amdhsa_user_sgpr_kernarg_segment_ptr 1\n"
                f"  .amdhsa_system_sgpr_workgroup_id_x 1\n"
                f"  .amdhsa_float_denorm_mode_32 3\n"
                f".end_amdhsa_kernel\n")

    def max_regs(self):
        mv = ma = ms = -1
        for tr in [self.trace(self.root, sc, []) for sc in self.scenarios] + [self.trace(c.body, {}, []) for c in
                                                                              self.colds]:
            for ins in tr:
                for (k, i) in ins.r | ins.w:
                    if k == "v":
                        mv = max(mv, i)
                    elif k == "a":
                        ma = max(ma, i)
                    elif k == "s":
                        ms = max(ms, i)
        return mv, ma, ms

    def auto_regs(self):
        mv, ma, ms = self.max_regs()
        self.accum = ((mv + 1 + 3) // 4) * 4
        self.vgpr = self.accum + ma + 1 if ma >= 0 else mv + 1
        self.sgpr = max(ms + 1, 16)
```

```python
from asmdsl import *

KA_X, KA_K, KA_V, KA_WQ, KA_WO, KA_BX, KA_WG, KA_WU, KA_WD, KA_C, KA_WMOD, KA_OUT, KA_DBG, KA_WS = [8 * i for i in
                                                                                                      range(14)]
WS_MOD = 0x0
WS_PT = 0x3C00
WS_U = 0x8000
WS_STATS = 0x10000
WS_H1 = 0x100000
WS_Y = 0x400000
WS_X1 = 0x700000
WS_A2 = 0xC00000
WS_O = 0x1400000

WS_WOT = 0x2400000
WS_WDT = 0x2A00000
SZ_WOT = 4096 * 640 * 2
SZ_WDT = 1728 * 640 * 2
SZ_MOD = 3840 * 4
SZ_U = 108 * 256
SZ_STATS = 2048 * 64
SZ_H1 = 2048 * 640 * 2
SZ_X1 = 2048 * 640 * 4
SZ_A2 = 2048 * 1728 * 2
SZ_O = 2048 * 4096 * 2

LOG2E = 1.4426950408889634


def f32hex(x):
    import struct
    return "0x%08x" % struct.unpack("<I", struct.pack("<f", x))[0]


def srd(k, dst, base, nbytes, add=0):
    if add:
        k.s_add_u32(dst[0], base[0], hex(add))
        k.s_addc_u32(dst[1], base[1], 0)
    else:
        k.s_mov_b32(dst[0], base[0])
        k.s_mov_b32(dst[1], base[1])
    k.s_mov_b32(dst[2], hex(nbytes))
    k.s_mov_b32(dst[3], "0x20000")


def swap_add(k, x, tmp, which):
    op = "v_permlane16_swap_b32" if which == 16 else "v_permlane32_swap_b32"
    for a_, t_ in zip(x, tmp):
        k.v_mov_b32(t_, a_)
    for a_, t_ in zip(x, tmp):
        k.op(op, a_, t_)
    for a_, t_ in zip(x, tmp):
        k.v_add_f32(a_, a_, t_)


def dpp_add(k, x, ctrl):
    for a_ in x:
        k.v_add_f32_dpp(a_, a_, a_, mods=f"{ctrl} row_mask:0xf bank_mask:0xf")


def unpack_bf16(k, lo, hi, src):
    k.v_lshlrev_b32(lo, 16, src)
    k.v_and_b32(hi, "0xffff0000", src)


WS_DBG = 0x3000000


class Stamps:
    def __init__(self, k, on, sbase=60, n=20):
        self.k, self.on, self.sbase, self.n, self.i = k, on, sbase, n, 0

    def stamp(self, real=False):
        if not self.on:
            return
        assert self.i < self.n
        if real:
            self.k.s_memrealtime(s(self.sbase + 2 * self.i, 2))
        else:
            self.k.s_memtime(s(self.sbase + 2 * self.i, 2))
        self.i += 1

    def dump(self, ws_pair, swave, vt, srd_regs, nwaves=8):
        if not self.on:
            return
        k = self.k
        k.waitcnt(lgkm=0)
        srd(k, srd_regs, ws_pair, 0x100000, WS_DBG)
        k.s_mul_i32(s(3), s(2), nwaves)
        k.s_add_u32(s(3), s(3), swave)
        k.s_lshl_b32(s(3), s(3), 7)
        k.v_mov_b32(vt[0], 0)
        for i in range(self.i):
            k.v_mov_b32(vt[1], s(self.sbase + 2 * i))
            k.buffer_store_dword(vt[1], vt[0], srd_regs, s(3), mods=f"offen offset:{4 * i}")
```

```python
from common import *


def gen_k0():
    k = Kernel("mod_kernel", scenarios=[{"p": "mod", "w0": True}, {"p": "mod", "w0": False}, {"p": "ln"}])
    done = "L_mod_done"
    lnpart = "L_mod_ln"
    k.s_cmp_ge_u32(s(2), 376)
    k.s_cbranch_scc1(done)
    k.s_load_dwordx4(s(4, 4), s(0, 2), KA_C)
    k.s_load_dwordx2(s(8, 2), s(0, 2), KA_WS)
    k.s_load_dwordx2(s(10, 2), s(0, 2), KA_X)
    t = v(0)
    wv = v(5)
    k.v_lshrrev_b32(wv, 6, t)
    k.s_cmp_ge_u32(s(2), 120)
    k.s_cbranch_scc1(lnpart)
    k.push(If(lambda sc: sc["p"] == "mod"))
    chunk, rg, voffw, voffc = v(1), v(2), v(3), v(4)
    k.v_and_b32(chunk, 3, t)
    k.v_lshrrev_b32(rg, 2, t)
    k.v_mul_u32_u24(voffw, 7680, rg)
    k.v_lshl_add_u32(voffw, chunk, 4, voffw)
    k.s_lshl_b32(s(3), s(2), 6)
    k.v_add_u32(voffw, s(3), voffw)
    k.v_lshlrev_b32(voffc, 1, rg)
    k.waitcnt(lgkm=0)
    SC, SW, SM = s(12, 4), s(16, 4), s(20, 4)
    srd(k, SW, s(6, 2), 640 * 7680)
    srd(k, SC, s(4, 2), 1280)
    W = [v(8 + 4 * i, 4) for i in range(5)]
    C = [v(28 + i) for i in range(5)]
    for i in range(5):
        k.buffer_load_ushort(C[i], voffc, SC, 0, mods=f"offen offset:{i * 256}")
    for i in range(5):
        k.s_mov_b32(s(24 + i), hex(i * 128 * 7680))
        k.buffer_load_dwordx4(W[i], voffw, SW, s(24 + i), mods="offen")
    srd(k, SM, s(8, 2), SZ_MOD + 2560, WS_MOD)
    E = [v(34 + i) for i in range(5)]
    k.s_mov_b32(s(30), f32hex(-LOG2E))
    for i in range(5):
        k.v_lshlrev_b32(C[i], 16, C[i])
    for i in range(5):
        k.v_mul_f32(E[i], s(30), C[i])
    for i in range(5):
        k.v_exp_f32(E[i], E[i])
    for i in range(5):
        k.v_add_f32(E[i], 1.0, E[i])
    for i in range(5):
        k.v_rcp_f32(E[i], E[i])
    for i in range(5):
        k.v_mul_f32(C[i], C[i], E[i])
    for i in range(5):
        k.v_cvt_pk_bf16_f32(C[i], C[i], C[i])
    for i in range(5):
        k.v_lshlrev_b32(C[i], 16, C[i])
    acc = [v(40 + j) for j in range(8)]
    tmp = [v(48 + j) for j in range(8)]
    for i in range(5):
        for j in range(4):
            unpack_bf16(k, tmp[2 * j], tmp[2 * j + 1], W[i][j])
        for j in range(8):
            if i == 0:
                k.v_mul_f32(acc[j], C[i], tmp[j])
            else:
                k.v_fmac_f32(acc[j], C[i], tmp[j])
    dpp_add(k, acc, "row_ror:4")
    dpp_add(k, acc, "row_ror:8")
    swap_add(k, acc, tmp, 16)
    swap_add(k, acc, tmp, 32)
    la = v(6)
    k.v_lshlrev_b32(la, 7, wv)
    k.v_lshl_add_u32(la, chunk, 5, la)
    k.ds_write_b128(la, v(40, 4))
    k.ds_write_b128(la, v(44, 4), mods="offset:16")
    k.v_readfirstlane_b32(s(31), wv)
    k.waitcnt(lgkm=0)
    k.s_barrier()
    k.s_cmp_lg_u32(s(31), 0)
    k.s_cbranch_scc1(done)
    k.push(If(lambda sc: sc["w0"]))
    col = v(7)
    k.v_and_b32(col, 31, t)
    k.v_lshlrev_b32(col, 2, col)
    for w in range(8):
        k.ds_read_b32(tmp[w], col, mods=f"offset:{w * 128}")
    k.v_add_f32(tmp[0], tmp[0], tmp[1])
    k.v_add_f32(tmp[2], tmp[2], tmp[3])
    k.v_add_f32(tmp[4], tmp[4], tmp[5])
    k.v_add_f32(tmp[6], tmp[6], tmp[7])
    k.v_add_f32(tmp[0], tmp[0], tmp[2])
    k.v_add_f32(tmp[4], tmp[4], tmp[6])
    k.v_add_f32(tmp[0], tmp[0], tmp[4])
    k.v_cvt_pk_bf16_f32(tmp[0], tmp[0], tmp[0])
    k.v_lshlrev_b32(tmp[0], 16, tmp[0])
    k.v_add_f32(tmp[1], 1.0, tmp[0])
    k.v_cvt_pk_bf16_f32(tmp[1], tmp[1], tmp[1])
    k.v_lshlrev_b32(tmp[1], 16, tmp[1])
    k.s_sub_u32(s(32), s(2), 20)
    k.s_cmp_lt_u32(s(32), 20)
    k.s_cselect_b32(s(33), 1, 0)
    k.s_sub_u32(s(32), s(2), 80)
    k.s_cmp_lt_u32(s(32), 20)
    k.s_cselect_b32(s(33), 1, s(33))
    k.s_cmp_lg_u32(s(33), 0)
    k.s_cselect_b64("vcc", -1, 0)
    k.v_cndmask_b32(tmp[0], tmp[0], tmp[1], "vcc")
    k.s_lshl_b32(s(3), s(2), 7)
    k.buffer_store_dword(tmp[0], col, SM, s(3), mods="offen")
    k.s_cmp_ge_u32(s(2), 40)
    k.s_cbranch_scc1(done)
    k.s_cmp_lt_u32(s(2), 20)
    k.s_cselect_b32(s(34), 16, 0)
    k.s_cselect_b32(s(35), 0, 20)
    k.s_sub_u32(s(35), s(2), s(35))
    k.s_lshl_b32(s(35), s(35), 7)
    k.s_add_u32(s(35), s(35), s(34))
    k.s_add_u32(s(35), s(35), hex(SZ_MOD))
    k.v_cvt_f16_f32(tmp[2], tmp[0])
    k.v_bfe_u32(tmp[3], t, 3, 2)
    k.v_lshlrev_b32(tmp[3], 5, tmp[3])
    k.v_and_b32(tmp[4], 7, t)
    k.v_lshl_add_u32(tmp[3], tmp[4], 1, tmp[3])
    k.buffer_store_short(tmp[2], tmp[3], SM, s(35), mods="offen")
    k.pop()
    k.s_endpgm()
    k.pop()
    k.label(lnpart)
    k.push(If(lambda sc: sc["p"] == "ln"))
    k.v_readfirstlane_b32(s(31), wv)
    SX, SH = s(16, 4), s(20, 4)
    r, c, row, vo = v(2), v(3), v(4), v(6)
    k.v_and_b32(r, 7, t)
    k.v_lshrrev_b32(c, 3, t)
    k.s_cmp_ge_u32(s(31), 5)
    k.s_cbranch_scc1(done)
    k.s_sub_u32(s(3), s(2), 120)
    k.s_lshl_b32(s(3), s(3), 3)
    k.v_add_u32(row, s(3), r)
    k.v_mul_u32_u24(vo, 1280, row)
    k.v_lshl_add_u32(vo, c, 4, vo)
    k.waitcnt(lgkm=0)
    srd(k, SX, s(10, 2), SZ_H1)
    X = [v(8, 4), v(12, 4)]
    k.buffer_load_dwordx4(X[0], vo, SX, 0, mods="offen")
    k.buffer_load_dwordx4(X[1], vo, SX, 0, mods="offen offset:640")
    srd(k, SH, s(8, 2), SZ_H1, WS_H1)
    a0, a1 = v(74), v(75)
    k.v_lshrrev_b32(a0, 5, row)
    k.v_mul_u32_u24(a0, 40, a0)
    k.v_lshrrev_b32(a1, 1, c)
    k.v_add_lshl_u32(a0, a0, a1, 10)
    k.v_and_b32(a1, 1, c)
    k.v_lshl_add_u32(a0, a1, 9, a0)
    k.v_and_b32(a1, 31, row)
    k.v_lshl_add_u32(a0, a1, 4, a0)
    k.s_movk_i32(s(25), 20 * 1024)
    F = v(48, 16)
    sm, tm = v(64), v(65)
    la, lr = v(66), v(67)
    T5 = [v(68 + i) for i in range(5)]
    k.v_lshlrev_b32(lr, 2, r)
    k.v_lshl_add_u32(la, wv, 5, lr)
    for h in range(2):
        for j in range(4):
            unpack_bf16(k, F[8 * h + 2 * j], F[8 * h + 2 * j + 1], X[h][j])

    def reduce(base):
        dpp_add(k, [sm], "row_ror:8")
        swap_add(k, [sm], [tm], 16)
        swap_add(k, [sm], [tm], 32)
        k.ds_write_b32(la, sm, mods=f"offset:{base}")
        k.waitcnt(lgkm=0)
        k.s_barrier()
        for w in range(5):
            k.ds_read_b32(T5[w], lr, mods=f"offset:{base + w * 32}")
        k.v_add_f32(T5[0], T5[0], T5[1])
        k.v_add_f32(T5[2], T5[2], T5[3])
        k.v_add_f32(T5[0], T5[0], T5[4])
        k.v_add_f32(sm, T5[0], T5[2])

    k.v_add_f32(sm, F[0], F[1])
    k.v_add_f32(tm, F[2], F[3])
    for j in range(4, 16, 2):
        k.v_add_f32(sm, sm, F[j])
        k.v_add_f32(tm, tm, F[j + 1])
    k.v_add_f32(sm, sm, tm)
    reduce(0)
    k.v_mul_f32(sm, f32hex(1.0 / 640), sm)
    for j in range(16):
        k.v_sub_f32(F[j], F[j], sm)
    k.v_mul_f32(sm, F[0], F[0])
    k.v_mul_f32(tm, F[1], F[1])
    for j in range(2, 16, 2):
        k.v_fmac_f32(sm, F[j], F[j])
        k.v_fmac_f32(tm, F[j + 1], F[j + 1])
    k.v_add_f32(sm, sm, tm)
    reduce(256)
    k.v_mov_b32(tm, f32hex(1e-5))
    k.v_fmac_f32(tm, f32hex(1.0 / 640), sm)
    k.v_rsq_f32(tm, tm)
    for j in range(16):
        k.v_mul_f32(F[j], F[j], tm)
    for h in range(2):
        for j in range(4):
            k.v_cvt_pk_f16_f32(X[h][j], F[8 * h + 2 * j], F[8 * h + 2 * j + 1])
    k.buffer_store_dwordx4(X[0], a0, SH, 0, mods="offen")
    k.buffer_store_dwordx4(X[1], a0, SH, s(25), mods="offen")
    k.pop()
    k.label(done)
    k.s_endpgm()
    k.auto_regs()
    k.launch = dict(grid=376, block=512, lds=1024)
    return k


def gen_ku():
    k = Kernel("uvec_kernel", scenarios=[{"w0": True}, {"w0": False}])
    done = "L_uvec_done"
    k.s_cmp_ge_u32(s(2), 216)
    k.s_cbranch_scc1(done)
    k.s_load_dwordx4(s(8, 4), s(0, 2), KA_WG)
    k.s_load_dwordx2(s(6, 2), s(0, 2), KA_WS)
    t = v(0)
    wv = v(1)
    k.v_lshrrev_b32(wv, 6, t)
    SM = s(12, 4)
    k.waitcnt(lgkm=0)
    srd(k, SM, s(6, 2), SZ_MOD, WS_MOD)
    SW, SU = s(16, 4), s(20, 4)
    blk, ft, mat = s(2), s(25), s(26)
    k.s_cmp_ge_u32(blk, 108)
    k.s_cselect_b32(mat, 1, 0)
    k.s_cselect_b32(s(27), 108, 0)
    k.s_cselect_b32(s(4), s(10), s(8))
    k.s_cselect_b32(s(5), s(11), s(9))
    k.s_sub_u32(ft, blk, s(27))
    srd(k, SW, s(4, 2), 640 * 3456)
    srd(k, SU, s(6, 2), SZ_U, WS_U)
    chunk, rg, vo, po = v(2), v(3), v(4), v(5)
    k.v_and_b32(chunk, 1, t)
    k.v_lshrrev_b32(rg, 1, t)
    k.v_mul_u32_u24(vo, 3456, rg)
    k.v_lshl_add_u32(vo, chunk, 4, vo)
    k.s_lshl_b32(s(3), ft, 5)
    k.v_add_u32(vo, s(3), vo)
    k.v_lshlrev_b32(po, 2, rg)
    W = [v(8 + 4 * i, 4) for i in range(4)]
    P1 = [v(24 + i) for i in range(4)]
    P2 = [v(28 + i) for i in range(4)]
    for i in range(4):
        k.s_mov_b32(s(28 + i), hex(i * 160 * 3456))
        k.buffer_load_dwordx4(W[i], vo, SW, s(28 + i), mods="offen")
    k.s_movk_i32(s(32), 2560 * 4)
    k.s_movk_i32(s(33), 1920 * 4)
    for i in range(4):
        k.buffer_load_dword(P1[i], po, SM, s(32), mods=f"offen offset:{i * 640}")
        k.buffer_load_dword(P2[i], po, SM, s(33), mods=f"offen offset:{i * 640}")
    acc = [v(32 + j) for j in range(16)]
    tmp = [v(48 + j) for j in range(16)]
    for i in range(4):
        for j in range(4):
            unpack_bf16(k, tmp[2 * j], tmp[2 * j + 1], W[i][j])
        for j in range(8):
            if i == 0:
                k.v_mul_f32(acc[j], P1[i], tmp[j])
                k.v_mul_f32(acc[8 + j], P2[i], tmp[j])
            else:
                k.v_fmac_f32(acc[j], P1[i], tmp[j])
                k.v_fmac_f32(acc[8 + j], P2[i], tmp[j])
    dpp_add(k, acc, "quad_perm:[2,3,0,1]")
    dpp_add(k, acc, "row_ror:4")
    dpp_add(k, acc, "row_ror:8")
    swap_add(k, acc, tmp, 16)
    swap_add(k, acc, tmp, 32)
    la = v(6)
    k.v_lshlrev_b32(la, 7, wv)
    k.v_lshl_add_u32(la, chunk, 5, la)
    k.ds_write_b128(la, v(32, 4))
    k.ds_write_b128(la, v(36, 4), mods="offset:16")
    k.ds_write_b128(la, v(40, 4), mods="offset:64")
    k.ds_write_b128(la, v(44, 4), mods="offset:80")
    k.v_readfirstlane_b32(s(34), wv)
    k.waitcnt(lgkm=0)
    k.s_barrier()
    k.s_cmp_lg_u32(s(34), 0)
    k.s_cbranch_scc1(done)
    k.push(If(lambda sc: sc.get("w0")))
    col = v(7)
    k.v_and_b32(col, 31, t)
    k.v_lshlrev_b32(col, 2, col)
    for w in range(5):
        k.ds_read_b32(tmp[w], col, mods=f"offset:{w * 128}")
    k.v_add_f32(tmp[0], tmp[0], tmp[1])
    k.v_add_f32(tmp[2], tmp[2], tmp[3])
    k.v_add_f32(tmp[0], tmp[0], tmp[4])
    k.v_add_f32(tmp[0], tmp[0], tmp[2])
    k.s_lshl_b32(s(3), ft, 8)
    k.s_lshl_b32(s(35), mat, 7)
    k.s_add_u32(s(3), s(3), s(35))
    k.buffer_store_dword(tmp[0], col, SU, s(3), mods="offen")
    k.pop()
    k.label(done)
    k.s_endpgm()
    k.auto_regs()
    k.launch = dict(grid=216, block=320, lds=1024)
    return k


def gen_kt():
    k = Kernel("wt_kernel")
    done = "L_wt_done"
    k.s_cmp_ge_u32(s(2), 182)
    k.s_cbranch_scc1(done)
    k.s_load_dwordx2(s(4, 2), s(0, 2), KA_WO)
    k.s_load_dwordx2(s(6, 2), s(0, 2), KA_WD)
    k.s_load_dwordx2(s(8, 2), s(0, 2), KA_WS)
    lane, tmp, vs, va, vd = v(1), v(2), v(3), v(4), v(5)
    k.v_and_b32(lane, 63, v(0))
    k.v_lshrrev_b32(tmp, 6, v(0))
    k.v_readfirstlane_b32(s(10), tmp)
    k.s_lshl_b32(s(11), s(2), 3)
    k.s_add_u32(s(11), s(11), s(10))
    k.waitcnt(lgkm=0)
    SS, SD = s(12, 4), s(16, 4)
    cb, ks, tl = s(20), s(21), s(22)
    k.s_sub_u32(s(23), s(11), 1024)
    k.s_mul_hi_u32(s(24), s(23), hex((2 ** 32 + 53) // 54))
    k.s_mul_i32(s(25), s(24), 54)
    k.s_sub_u32(s(25), s(23), s(25))
    k.s_lshr_b32(s(26), s(11), 7)
    k.s_and_b32(s(27), s(11), 127)
    k.s_cmp_lt_u32(s(11), 1024)
    k.s_cselect_b32(cb, s(26), s(24))
    k.s_cselect_b32(ks, s(27), s(25))
    k.s_cselect_b32(tl, s(11), s(23))
    k.s_cselect_b32(SS[0], s(4), s(6))
    k.s_cselect_b32(SS[1], s(5), s(7))
    k.s_mov_b32(SS[2], hex(SZ_WDT))
    k.s_cselect_b32(SS[2], hex(SZ_WOT), SS[2])
    k.s_mov_b32(SS[3], "0x20000")
    k.s_mov_b32(s(28), hex(WS_WDT))
    k.s_cselect_b32(s(28), hex(WS_WOT), s(28))
    k.s_add_u32(SD[0], s(8), s(28))
    k.s_addc_u32(SD[1], s(9), 0)
    k.s_mov_b32(SD[2], SS[2])
    k.s_mov_b32(SD[3], "0x20000")
    k.v_lshrrev_b32(tmp, 1, lane)
    k.v_mul_u32_u24(vs, 1280, tmp)
    k.v_and_b32(tmp, 1, lane)
    k.v_lshl_add_u32(vs, tmp, 4, vs)
    k.s_mul_i32(s(29), ks, 32 * 1280)
    k.s_mul_i32(s(30), cb, 160)
    k.s_add_u32(s(29), s(29), s(30))
    k.s_mul_i32(s(31), s(10), 5120)
    for nt in range(5):
        k.s_add_u32("m0", s(31), nt * 1024 - nt * 32)
        k.buffer_load_dwordx4(vs, SS, s(29), mods=f"offen offset:{nt * 32} lds", tag="T")
    g1, g0, r_, c_ = v(6), v(7), v(8), v(9)
    k.v_bfe_u32(g1, lane, 5, 1)
    k.v_bfe_u32(g0, lane, 4, 1)
    k.v_bfe_u32(r_, lane, 2, 2)
    k.v_and_b32(c_, 3, lane)
    k.v_lshl_add_u32(va, g1, 2, g0)
    k.v_lshl_add_u32(va, va, 2, r_)
    k.v_lshlrev_b32(va, 5, va)
    k.v_lshl_add_u32(va, c_, 3, va)
    k.v_add_u32(va, s(31), va)
    k.v_lshlrev_b32(vd, 4, lane)
    k.s_mul_i32(s(32), tl, 5120)
    k.need("T")
    F = [v(12 + 4 * i, 4) for i in range(5)]
    for nt in range(5):
        for rd in range(2):
            k.ds_read_b64_tr_b16(F[nt][2 * rd:2 * rd + 2], va, mods=f"offset:{nt * 1024 + rd * 256}")
    for nt in range(5):
        if nt == 4:
            k.s_add_u32(s(32), s(32), 4096)
        k.buffer_store_dwordx4(F[nt], vd, SD, s(32), mods=f"offen offset:{(nt % 4) * 1024}")
    k.label(done)
    k.s_endpgm()
    k.auto_regs()
    k.launch = dict(grid=182, block=512, lds=40960)
    return k
```

```python
import sys, os, importlib
sys.path.insert(0, os.path.dirname(os.path.abspath(__file__)))
from common import *

HEADER = open(os.path.join(os.path.dirname(os.path.abspath(__file__)), "..", "cdna_kernels",
              "adaLN_cond__sliding_block_cached__swiglu_ffn__prompt.s.ref")).read().split("; Override launch")[0]


def build(kernels):
    out = [HEADER.rstrip("\n")]
    for k in kernels:
        L = k.launch
        out.append(f"; @launch kernel={k.name} grid=({L['grid']},1,1) block=({L['block']},1,1) lds={L['lds']}")
    out.append('.amdgcn_target "amdgcn-amd-amdhsa--gfx950"')
    out.append(".text")
    seen = set()
    uniq = []
    for k in kernels:
        if k.name not in seen:
            seen.add(k.name)
            uniq.append(k)
    for k in uniq:
        out.append(k.text())
    out.append('.section .rodata,"a"')
    for k in uniq:
        out.append(k.descriptor())
    return "\n".join(out)


def main():
    import k0
    ks = [k0.gen_k0()]
    opts = dict(a.split("=") for a in sys.argv[2:] if "=" in a)
    for modname, fn in (("k1b", "gen_k1"), ("k2", "gen_k2"), ("k3b", "gen_k3"), ("k2", "gen_k4")):
        try:
            m = importlib.import_module(modname)
        except ImportError as e:
            if modname not in str(e):
                raise
            break
        ks.append(getattr(m, fn)(**{k_: v_ for k_, v_ in opts.items() if k_.startswith(fn[4:] + "_")}))
    txt = build(ks)
    dst = sys.argv[1] if len(sys.argv) > 1 else os.path.join(os.path.dirname(os.path.abspath(__file__)), "..",
          "cdna_kernels", "adaLN_cond__sliding_block_cached__swiglu_ffn__prompt.s")
    open(dst, "w").write(txt)
    for k in ks:
        print(k.name, "vgpr", k.vgpr, "accum", k.accum, "sgpr", k.sgpr, "trace", k.ntrace, k.launch)


if __name__ == "__main__":
    main()
```

```python
from common import *


def gen_k0(wt=0):
    k = Kernel("mod_kernel", scenarios=[{"p": "mod", "w0": True}, {"p": "mod", "w0": False}, {"p": "ln"}, {"p": "wt"}])
    done = "L_mod_done"
    lnpart = "L_mod_ln"
    k.s_cmp_ge_u32(s(2), 558 if wt else 376)
    k.s_cbranch_scc1(done)
    k.s_cmp_ge_u32(s(2), 376)
    k.s_cbranch_scc1("L_mod_wt")
    k.push(If(lambda sc: sc["p"] != "wt"))
    k.s_load_dwordx4(s(4, 4), s(0, 2), KA_C)
    k.s_load_dwordx2(s(8, 2), s(0, 2), KA_WS)
    k.s_load_dwordx2(s(10, 2), s(0, 2), KA_X)
    t = v(0)
    wv = v(5)
    k.v_lshrrev_b32(wv, 6, t)
    k.s_cmp_ge_u32(s(2), 120)
    k.s_cbranch_scc1(lnpart)
    k.pop()
    k.push(If(lambda sc: sc["p"] == "mod"))
    chunk, rg, voffw, voffc = v(1), v(2), v(3), v(4)
    k.v_and_b32(chunk, 3, t)
    k.v_lshrrev_b32(rg, 2, t)
    k.v_mul_u32_u24(voffw, 7680, rg)
    k.v_lshl_add_u32(voffw, chunk, 4, voffw)
    k.s_lshl_b32(s(3), s(2), 6)
    k.v_add_u32(voffw, s(3), voffw)
    k.v_lshlrev_b32(voffc, 1, rg)
    k.waitcnt(lgkm=0)
    SC, SW, SM = s(12, 4), s(16, 4), s(20, 4)
    srd(k, SW, s(6, 2), 640 * 7680)
    srd(k, SC, s(4, 2), 1280)
    W = [v(8 + 4 * i, 4) for i in range(5)]
    C = [v(28 + i) for i in range(5)]
    for i in range(5):
        k.buffer_load_ushort(C[i], voffc, SC, 0, mods=f"offen offset:{i * 256}")
    for i in range(5):
        k.s_mov_b32(s(24 + i), hex(i * 128 * 7680))
        k.buffer_load_dwordx4(W[i], voffw, SW, s(24 + i), mods="offen")
    srd(k, SM, s(8, 2), SZ_MOD + 2560, WS_MOD)
    E = [v(34 + i) for i in range(5)]
    k.s_mov_b32(s(30), f32hex(-LOG2E))
    for i in range(5):
        k.v_lshlrev_b32(C[i], 16, C[i])
    for i in range(5):
        k.v_mul_f32(E[i], s(30), C[i])
    for i in range(5):
        k.v_exp_f32(E[i], E[i])
    for i in range(5):
        k.v_add_f32(E[i], 1.0, E[i])
    for i in range(5):
        k.v_rcp_f32(E[i], E[i])
    for i in range(5):
        k.v_mul_f32(C[i], C[i], E[i])
    for i in range(5):
        k.v_cvt_pk_bf16_f32(C[i], C[i], C[i])
    for i in range(5):
        k.v_lshlrev_b32(C[i], 16, C[i])
    acc = [v(40 + j) for j in range(8)]
    tmp = [v(48 + j) for j in range(8)]
    for i in range(5):
        for j in range(4):
            unpack_bf16(k, tmp[2 * j], tmp[2 * j + 1], W[i][j])
        for j in range(8):
            if i == 0:
                k.v_mul_f32(acc[j], C[i], tmp[j])
            else:
                k.v_fmac_f32(acc[j], C[i], tmp[j])
    dpp_add(k, acc, "row_ror:4")
    dpp_add(k, acc, "row_ror:8")
    swap_add(k, acc, tmp, 16)
    swap_add(k, acc, tmp, 32)
    la = v(6)
    k.v_lshlrev_b32(la, 7, wv)
    k.v_lshl_add_u32(la, chunk, 5, la)
    k.ds_write_b128(la, v(40, 4))
    k.ds_write_b128(la, v(44, 4), mods="offset:16")
    k.v_readfirstlane_b32(s(31), wv)
    k.waitcnt(lgkm=0)
    k.s_barrier()
    k.s_cmp_lg_u32(s(31), 0)
    k.s_cbranch_scc1(done)
    k.push(If(lambda sc: sc["w0"]))
    col = v(7)
    k.v_and_b32(col, 31, t)
    k.v_lshlrev_b32(col, 2, col)
    for w in range(8):
        k.ds_read_b32(tmp[w], col, mods=f"offset:{w * 128}")
    k.v_add_f32(tmp[0], tmp[0], tmp[1])
    k.v_add_f32(tmp[2], tmp[2], tmp[3])
    k.v_add_f32(tmp[4], tmp[4], tmp[5])
    k.v_add_f32(tmp[6], tmp[6], tmp[7])
    k.v_add_f32(tmp[0], tmp[0], tmp[2])
    k.v_add_f32(tmp[4], tmp[4], tmp[6])
    k.v_add_f32(tmp[0], tmp[0], tmp[4])
    k.v_cvt_pk_bf16_f32(tmp[0], tmp[0], tmp[0])
    k.v_lshlrev_b32(tmp[0], 16, tmp[0])
    k.v_add_f32(tmp[1], 1.0, tmp[0])
    k.v_cvt_pk_bf16_f32(tmp[1], tmp[1], tmp[1])
    k.v_lshlrev_b32(tmp[1], 16, tmp[1])
    k.s_sub_u32(s(32), s(2), 20)
    k.s_cmp_lt_u32(s(32), 20)
    k.s_cselect_b32(s(33), 1, 0)
    k.s_sub_u32(s(32), s(2), 80)
    k.s_cmp_lt_u32(s(32), 20)
    k.s_cselect_b32(s(33), 1, s(33))
    k.s_cmp_lg_u32(s(33), 0)
    k.s_cselect_b64("vcc", -1, 0)
    k.v_cndmask_b32(tmp[0], tmp[0], tmp[1], "vcc")
    k.s_lshl_b32(s(3), s(2), 7)
    k.buffer_store_dword(tmp[0], col, SM, s(3), mods="offen")
    k.s_cmp_ge_u32(s(2), 40)
    k.s_cbranch_scc1(done)
    k.s_cmp_lt_u32(s(2), 20)
    k.s_cselect_b32(s(34), 16, 0)
    k.s_cselect_b32(s(35), 0, 20)
    k.s_sub_u32(s(35), s(2), s(35))
    k.s_lshl_b32(s(35), s(35), 7)
    k.s_add_u32(s(35), s(35), s(34))
    k.s_add_u32(s(35), s(35), hex(SZ_MOD))
    k.v_cvt_f16_f32(tmp[2], tmp[0])
    k.v_bfe_u32(tmp[3], t, 3, 2)
    k.v_lshlrev_b32(tmp[3], 5, tmp[3])
    k.v_and_b32(tmp[4], 7, t)
    k.v_lshl_add_u32(tmp[3], tmp[4], 1, tmp[3])
    k.buffer_store_short(tmp[2], tmp[3], SM, s(35), mods="offen")
    k.pop()
    k.s_endpgm()
    k.pop()
    k.label(lnpart)
    k.push(If(lambda sc: sc["p"] == "ln"))
    k.v_readfirstlane_b32(s(31), wv)
    SX, SH = s(16, 4), s(20, 4)
    r, c, row, vo = v(2), v(3), v(4), v(6)
    k.v_and_b32(r, 7, t)
    k.v_lshrrev_b32(c, 3, t)
    k.s_cmp_ge_u32(s(31), 5)
    k.s_cbranch_scc1(done)
    k.s_sub_u32(s(3), s(2), 120)
    k.s_lshl_b32(s(3), s(3), 3)
    k.v_add_u32(row, s(3), r)
    k.v_mul_u32_u24(vo, 1280, row)
    k.v_lshl_add_u32(vo, c, 4, vo)
    k.waitcnt(lgkm=0)
    srd(k, SX, s(10, 2), SZ_H1)
    X = [v(8, 4), v(12, 4)]
    k.buffer_load_dwordx4(X[0], vo, SX, 0, mods="offen")
    k.buffer_load_dwordx4(X[1], vo, SX, 0, mods="offen offset:640")
    srd(k, SH, s(8, 2), SZ_H1, WS_H1)
    a0, a1 = v(74), v(75)
    k.v_lshrrev_b32(a0, 5, row)
    k.v_mul_u32_u24(a0, 40, a0)
    k.v_lshrrev_b32(a1, 1, c)
    k.v_add_lshl_u32(a0, a0, a1, 10)
    k.v_and_b32(a1, 1, c)
    k.v_lshl_add_u32(a0, a1, 9, a0)
    k.v_and_b32(a1, 31, row)
    k.v_lshl_add_u32(a0, a1, 4, a0)
    k.s_movk_i32(s(25), 20 * 1024)
    F = v(48, 16)
    sm, tm = v(64), v(65)
    la, lr = v(66), v(67)
    T5 = [v(68 + i) for i in range(5)]
    k.v_lshlrev_b32(lr, 2, r)
    k.v_lshl_add_u32(la, wv, 5, lr)
    for h in range(2):
        for j in range(4):
            unpack_bf16(k, F[8 * h + 2 * j], F[8 * h + 2 * j + 1], X[h][j])

    def reduce(base):
        dpp_add(k, [sm], "row_ror:8")
        swap_add(k, [sm], [tm], 16)
        swap_add(k, [sm], [tm], 32)
        k.ds_write_b32(la, sm, mods=f"offset:{base}")
        k.waitcnt(lgkm=0)
        k.s_barrier()
        for w in range(5):
            k.ds_read_b32(T5[w], lr, mods=f"offset:{base + w * 32}")
        k.v_add_f32(T5[0], T5[0], T5[1])
        k.v_add_f32(T5[2], T5[2], T5[3])
        k.v_add_f32(T5[0], T5[0], T5[4])
        k.v_add_f32(sm, T5[0], T5[2])

    k.v_add_f32(sm, F[0], F[1])
    k.v_add_f32(tm, F[2], F[3])
    for j in range(4, 16, 2):
        k.v_add_f32(sm, sm, F[j])
        k.v_add_f32(tm, tm, F[j + 1])
    k.v_add_f32(sm, sm, tm)
    reduce(0)
    k.v_mul_f32(sm, f32hex(1.0 / 640), sm)
    for j in range(16):
        k.v_sub_f32(F[j], F[j], sm)
    k.v_mul_f32(sm, F[0], F[0])
    k.v_mul_f32(tm, F[1], F[1])
    for j in range(2, 16, 2):
        k.v_fmac_f32(sm, F[j], F[j])
        k.v_fmac_f32(tm, F[j + 1], F[j + 1])
    k.v_add_f32(sm, sm, tm)
    reduce(256)
    k.v_mov_b32(tm, f32hex(1e-5))
    k.v_fmac_f32(tm, f32hex(1.0 / 640), sm)
    k.v_rsq_f32(tm, tm)
    for j in range(16):
        k.v_mul_f32(F[j], F[j], tm)
    for h in range(2):
        for j in range(4):
            k.v_cvt_pk_f16_f32(X[h][j], F[8 * h + 2 * j], F[8 * h + 2 * j + 1])
    k.buffer_store_dwordx4(X[0], a0, SH, 0, mods="offen")
    k.buffer_store_dwordx4(X[1], a0, SH, s(25), mods="offen")
    k.s_endpgm()
    k.pop()
    k.label("L_mod_wt")
    k.push(If(lambda sc: sc["p"] == "wt"))
    k.s_load_dwordx2(s(4, 2), s(0, 2), KA_WO)
    k.s_load_dwordx2(s(6, 2), s(0, 2), KA_WD)
    k.s_load_dwordx2(s(8, 2), s(0, 2), KA_WS)
    k.s_sub_u32(s(3), s(2), 376)
    emit_wt(k, s(3))
    k.pop()
    k.label(done)
    k.s_endpgm()
    k.auto_regs()
    k.launch = dict(grid=558, block=512, lds=40960) if wt else dict(grid=376, block=512, lds=1024)
    return k


def emit_uvec(k, blk, done):
    k.s_load_dwordx4(s(8, 4), s(0, 2), KA_WG)
    k.s_load_dwordx2(s(6, 2), s(0, 2), KA_WS)
    t = v(0)
    wv = v(1)
    k.v_lshrrev_b32(wv, 6, t)
    SM = s(12, 4)
    k.waitcnt(lgkm=0)
    srd(k, SM, s(6, 2), SZ_MOD, WS_MOD)
    SW, SU = s(16, 4), s(20, 4)
    ft, mat = s(25), s(26)
    k.s_cmp_ge_u32(blk, 108)
    k.s_cselect_b32(mat, 1, 0)
    k.s_cselect_b32(s(27), 108, 0)
    k.s_cselect_b32(s(4), s(10), s(8))
    k.s_cselect_b32(s(5), s(11), s(9))
    k.s_sub_u32(ft, blk, s(27))
    srd(k, SW, s(4, 2), 640 * 3456)
    srd(k, SU, s(6, 2), SZ_U, WS_U)
    chunk, rg, vo, po = v(2), v(3), v(4), v(5)
    k.v_and_b32(chunk, 1, t)
    k.v_lshrrev_b32(rg, 1, t)
    k.v_mul_u32_u24(vo, 3456, rg)
    k.v_lshl_add_u32(vo, chunk, 4, vo)
    k.s_lshl_b32(s(3), ft, 5)
    k.v_add_u32(vo, s(3), vo)
    k.v_lshlrev_b32(po, 2, rg)
    W = [v(8 + 4 * i, 4) for i in range(5)]
    P1 = [v(28 + i) for i in range(5)]
    P2 = [v(64 + i) for i in range(5)]
    for i in range(5):
        k.s_mov_b32(s(28 + i), hex(i * 128 * 3456))
        k.buffer_load_dwordx4(W[i], vo, SW, s(28 + i), mods="offen")
    k.s_movk_i32(s(33), 2560 * 4)
    k.s_movk_i32(s(34), 1920 * 4)
    for i in range(5):
        k.buffer_load_dword(P1[i], po, SM, s(33), mods=f"offen offset:{i * 512}")
        k.buffer_load_dword(P2[i], po, SM, s(34), mods=f"offen offset:{i * 512}")
    acc = [v(36 + j) for j in range(16)]
    tmp = [v(72 + j) for j in range(16)]
    for i in range(5):
        for j in range(4):
            unpack_bf16(k, tmp[2 * j], tmp[2 * j + 1], W[i][j])
        for j in range(8):
            if i == 0:
                k.v_mul_f32(acc[j], P1[i], tmp[j])
                k.v_mul_f32(acc[8 + j], P2[i], tmp[j])
            else:
                k.v_fmac_f32(acc[j], P1[i], tmp[j])
                k.v_fmac_f32(acc[8 + j], P2[i], tmp[j])
    dpp_add(k, acc, "quad_perm:[2,3,0,1]")
    dpp_add(k, acc, "row_ror:4")
    dpp_add(k, acc, "row_ror:8")
    swap_add(k, acc, tmp, 16)
    swap_add(k, acc, tmp, 32)
    la = v(6)
    k.v_lshlrev_b32(la, 7, wv)
    k.v_lshl_add_u32(la, chunk, 5, la)
    k.ds_write_b128(la, v(36, 4))
    k.ds_write_b128(la, v(40, 4), mods="offset:16")
    k.ds_write_b128(la, v(44, 4), mods="offset:64")
    k.ds_write_b128(la, v(48, 4), mods="offset:80")
    k.v_readfirstlane_b32(s(35), wv)
    k.waitcnt(lgkm=0)
    k.s_barrier()
    k.s_cmp_lg_u32(s(35), 0)
    k.s_cbranch_scc1(done)
    col = v(7)
    k.v_and_b32(col, 31, t)
    k.v_lshlrev_b32(col, 2, col)
    for w in range(4):
        k.ds_read_b32(tmp[w], col, mods=f"offset:{w * 128}")
    k.v_add_f32(tmp[0], tmp[0], tmp[1])
    k.v_add_f32(tmp[2], tmp[2], tmp[3])
    k.v_add_f32(tmp[0], tmp[0], tmp[2])
    k.s_lshl_b32(s(3), ft, 8)
    k.s_lshl_b32(s(36), mat, 7)
    k.s_add_u32(s(3), s(3), s(36))
    k.buffer_store_dword(tmp[0], col, SU, s(3), mods="offen")


def emit_wt(k, wg):
    lane, tmp, vs, va, vd = v(1), v(2), v(3), v(4), v(5)
    k.v_and_b32(lane, 63, v(0))
    k.v_lshrrev_b32(tmp, 6, v(0))
    k.v_readfirstlane_b32(s(10), tmp)
    k.s_lshl_b32(s(11), wg, 3)
    k.s_add_u32(s(11), s(11), s(10))
    k.waitcnt(lgkm=0)
    SS, SD = s(12, 4), s(16, 4)
    cb, ks, tl = s(20), s(21), s(22)
    k.s_sub_u32(s(23), s(11), 1024)
    k.s_mul_hi_u32(s(24), s(23), hex((2 ** 32 + 53) // 54))
    k.s_mul_i32(s(25), s(24), 54)
    k.s_sub_u32(s(25), s(23), s(25))
    k.s_lshr_b32(s(26), s(11), 7)
    k.s_and_b32(s(27), s(11), 127)
    k.s_cmp_lt_u32(s(11), 1024)
    k.s_cselect_b32(cb, s(26), s(24))
    k.s_cselect_b32(ks, s(27), s(25))
    k.s_cselect_b32(tl, s(11), s(23))
    k.s_cselect_b32(SS[0], s(4), s(6))
    k.s_cselect_b32(SS[1], s(5), s(7))
    k.s_mov_b32(SS[2], hex(SZ_WDT))
    k.s_cselect_b32(SS[2], hex(SZ_WOT), SS[2])
    k.s_mov_b32(SS[3], "0x20000")
    k.s_mov_b32(s(28), hex(WS_WDT))
    k.s_cselect_b32(s(28), hex(WS_WOT), s(28))
    k.s_add_u32(SD[0], s(8), s(28))
    k.s_addc_u32(SD[1], s(9), 0)
    k.s_mov_b32(SD[2], SS[2])
    k.s_mov_b32(SD[3], "0x20000")
    k.v_lshrrev_b32(tmp, 1, lane)
    k.v_mul_u32_u24(vs, 1280, tmp)
    k.v_and_b32(tmp, 1, lane)
    k.v_lshl_add_u32(vs, tmp, 4, vs)
    k.s_mul_i32(s(29), ks, 32 * 1280)
    k.s_mul_i32(s(30), cb, 160)
    k.s_add_u32(s(29), s(29), s(30))
    k.s_mul_i32(s(31), s(10), 5120)
    for nt in range(5):
        k.s_add_u32("m0", s(31), nt * 1024 - nt * 32)
        k.buffer_load_dwordx4(vs, SS, s(29), mods=f"offen offset:{nt * 32} lds", tag="T")
    g1, g0, r_, c_ = v(6), v(7), v(8), v(9)
    k.v_bfe_u32(g1, lane, 5, 1)
    k.v_bfe_u32(g0, lane, 4, 1)
    k.v_bfe_u32(r_, lane, 2, 2)
    k.v_and_b32(c_, 3, lane)
    k.v_lshl_add_u32(va, g1, 2, g0)
    k.v_lshl_add_u32(va, va, 2, r_)
    k.v_lshlrev_b32(va, 5, va)
    k.v_lshl_add_u32(va, c_, 3, va)
    k.v_add_u32(va, s(31), va)
    k.v_lshlrev_b32(vd, 4, lane)
    k.s_mul_i32(s(32), tl, 5120)
    k.need("T")
    F = [v(12 + 4 * i, 4) for i in range(5)]
    for nt in range(5):
        for rd in range(2):
            k.ds_read_b64_tr_b16(F[nt][2 * rd:2 * rd + 2], va, mods=f"offset:{nt * 1024 + rd * 256}")
    for nt in range(5):
        if nt == 4:
            k.s_add_u32(s(32), s(32), 4096)
        k.buffer_store_dwordx4(F[nt], vd, SD, s(32), mods=f"offen offset:{(nt % 4) * 1024}")
```

```python
from common import *


def gen_k0(wt=0):
    k = Kernel("mod_kernel", scenarios=[{"p": "mod", "w0": True}, {"p": "mod", "w0": False}, {"p": "ln"}, {"p": "wt"}])
    done = "L_mod_done"
    lnpart = "L_mod_ln"
    k.s_cmp_ge_u32(s(2), 558 if wt else 376)
    k.s_cbranch_scc1(done)
    k.s_cmp_ge_u32(s(2), 376)
    k.s_cbranch_scc1("L_mod_wt")
    k.push(If(lambda sc: sc["p"] != "wt"))
    k.s_load_dwordx4(s(4, 4), s(0, 2), KA_C)
    k.s_load_dwordx2(s(8, 2), s(0, 2), KA_WS)
    k.s_load_dwordx2(s(10, 2), s(0, 2), KA_X)
    t = v(0)
    wv = v(5)
    k.v_lshrrev_b32(wv, 6, t)
    k.s_cmp_ge_u32(s(2), 120)
    k.s_cbranch_scc1(lnpart)
    k.pop()
    k.push(If(lambda sc: sc["p"] == "mod"))
    chunk, rg, voffw, voffc = v(1), v(2), v(3), v(4)
    k.v_and_b32(chunk, 3, t)
    k.v_lshrrev_b32(rg, 2, t)
    k.v_mul_u32_u24(voffw, 7680, rg)
    k.v_lshl_add_u32(voffw, chunk, 4, voffw)
    k.s_lshl_b32(s(3), s(2), 6)
    k.v_add_u32(voffw, s(3), voffw)
    k.v_lshlrev_b32(voffc, 1, rg)
    k.waitcnt(lgkm=0)
    SC, SW, SM = s(12, 4), s(16, 4), s(20, 4)
    srd(k, SW, s(6, 2), 640 * 7680)
    srd(k, SC, s(4, 2), 1280)
    W = [v(8 + 4 * i, 4) for i in range(5)]
    C = [v(28 + i) for i in range(5)]
    for i in range(5):
        k.buffer_load_ushort(C[i], voffc, SC, 0, mods=f"offen offset:{i * 256}")
    for i in range(5):
        k.s_mov_b32(s(24 + i), hex(i * 128 * 7680))
        k.buffer_load_dwordx4(W[i], voffw, SW, s(24 + i), mods="offen")
    srd(k, SM, s(8, 2), SZ_MOD + 2560, WS_MOD)
    E = [v(34 + i) for i in range(5)]
    k.s_mov_b32(s(30), f32hex(-LOG2E))
    for i in range(5):
        k.v_lshlrev_b32(C[i], 16, C[i])
    for i in range(5):
        k.v_mul_f32(E[i], s(30), C[i])
    for i in range(5):
        k.v_exp_f32(E[i], E[i])
    for i in range(5):
        k.v_add_f32(E[i], 1.0, E[i])
    for i in range(5):
        k.v_rcp_f32(E[i], E[i])
    for i in range(5):
        k.v_mul_f32(C[i], C[i], E[i])
    for i in range(5):
        k.v_cvt_pk_bf16_f32(C[i], C[i], C[i])
    for i in range(5):
        k.v_lshlrev_b32(C[i], 16, C[i])
    acc = [v(40 + j) for j in range(8)]
    tmp = [v(48 + j) for j in range(8)]
    for i in range(5):
        for j in range(4):
            unpack_bf16(k, tmp[2 * j], tmp[2 * j + 1], W[i][j])
        for j in range(8):
            if i == 0:
                k.v_mul_f32(acc[j], C[i], tmp[j])
            else:
                k.v_fmac_f32(acc[j], C[i], tmp[j])
    dpp_add(k, acc, "row_ror:4")
    dpp_add(k, acc, "row_ror:8")
    swap_add(k, acc, tmp, 16)
    swap_add(k, acc, tmp, 32)
    la = v(6)
    k.v_lshlrev_b32(la, 7, wv)
    k.v_lshl_add_u32(la, chunk, 5, la)
    k.ds_write_b128(la, v(40, 4))
    k.ds_write_b128(la, v(44, 4), mods="offset:16")
    k.v_readfirstlane_b32(s(31), wv)
    k.waitcnt(lgkm=0)
    k.s_barrier()
    k.s_cmp_lg_u32(s(31), 0)
    k.s_cbranch_scc1(done)
    k.push(If(lambda sc: sc["w0"]))
    col = v(7)
    k.v_and_b32(col, 31, t)
    k.v_lshlrev_b32(col, 2, col)
    for w in range(8):
        k.ds_read_b32(tmp[w], col, mods=f"offset:{w * 128}")
    k.v_add_f32(tmp[0], tmp[0], tmp[1])
    k.v_add_f32(tmp[2], tmp[2], tmp[3])
    k.v_add_f32(tmp[4], tmp[4], tmp[5])
    k.v_add_f32(tmp[6], tmp[6], tmp[7])
    k.v_add_f32(tmp[0], tmp[0], tmp[2])
    k.v_add_f32(tmp[4], tmp[4], tmp[6])
    k.v_add_f32(tmp[0], tmp[0], tmp[4])
    k.v_cvt_pk_bf16_f32(tmp[0], tmp[0], tmp[0])
    k.v_lshlrev_b32(tmp[0], 16, tmp[0])
    k.v_add_f32(tmp[1], 1.0, tmp[0])
    k.v_cvt_pk_bf16_f32(tmp[1], tmp[1], tmp[1])
    k.v_lshlrev_b32(tmp[1], 16, tmp[1])
    k.s_sub_u32(s(32), s(2), 20)
    k.s_cmp_lt_u32(s(32), 20)
    k.s_cselect_b32(s(33), 1, 0)
    k.s_sub_u32(s(32), s(2), 80)
    k.s_cmp_lt_u32(s(32), 20)
    k.s_cselect_b32(s(33), 1, s(33))
    k.s_cmp_lg_u32(s(33), 0)
    k.s_cselect_b64("vcc", -1, 0)
    k.v_cndmask_b32(tmp[0], tmp[0], tmp[1], "vcc")
    k.s_lshl_b32(s(3), s(2), 7)
    k.buffer_store_dword(tmp[0], col, SM, s(3), mods="offen")
    k.s_cmp_ge_u32(s(2), 40)
    k.s_cbranch_scc1(done)
    k.s_cmp_lt_u32(s(2), 20)
    k.s_cselect_b32(s(34), 16, 0)
    k.s_cselect_b32(s(35), 0, 20)
    k.s_sub_u32(s(35), s(2), s(35))
    k.s_lshl_b32(s(35), s(35), 7)
    k.s_add_u32(s(35), s(35), s(34))
    k.s_add_u32(s(35), s(35), hex(SZ_MOD))
    k.v_cvt_f16_f32(tmp[2], tmp[0])
    k.v_bfe_u32(tmp[3], t, 2, 2)
    k.v_lshlrev_b32(tmp[3], 5, tmp[3])
    k.v_bfe_u32(tmp[4], t, 4, 1)
    k.v_lshl_add_u32(tmp[3], tmp[4], 3, tmp[3])
    k.v_and_b32(tmp[4], 3, t)
    k.v_lshl_add_u32(tmp[3], tmp[4], 1, tmp[3])
    k.buffer_store_short(tmp[2], tmp[3], SM, s(35), mods="offen")
    k.pop()
    k.s_endpgm()
    k.pop()
    k.label(lnpart)
    k.push(If(lambda sc: sc["p"] == "ln"))
    k.v_readfirstlane_b32(s(31), wv)
    SX, SH = s(16, 4), s(20, 4)
    r, c, row, vo = v(2), v(3), v(4), v(6)
    k.v_and_b32(r, 7, t)
    k.v_lshrrev_b32(c, 3, t)
    k.s_cmp_ge_u32(s(31), 5)
    k.s_cbranch_scc1(done)
    k.s_sub_u32(s(3), s(2), 120)
    k.s_lshl_b32(s(3), s(3), 3)
    k.v_add_u32(row, s(3), r)
    k.v_mul_u32_u24(vo, 1280, row)
    k.v_lshl_add_u32(vo, c, 4, vo)
    k.waitcnt(lgkm=0)
    srd(k, SX, s(10, 2), SZ_H1)
    X = [v(8, 4), v(12, 4)]
    k.buffer_load_dwordx4(X[0], vo, SX, 0, mods="offen")
    k.buffer_load_dwordx4(X[1], vo, SX, 0, mods="offen offset:640")
    srd(k, SH, s(8, 2), SZ_H1, WS_H1)
    a0, a1 = v(74), v(75)
    k.v_lshrrev_b32(a0, 4, row)
    k.v_mul_u32_u24(a0, 20, a0)
    k.v_lshrrev_b32(a1, 2, c)
    k.v_add_lshl_u32(a0, a0, a1, 10)
    k.v_and_b32(a1, 1, c)
    k.v_lshl_add_u32(a0, a1, 9, a0)
    k.v_bfe_u32(a1, c, 1, 1)
    k.v_lshl_add_u32(a0, a1, 3, a0)
    k.v_and_b32(a1, 15, row)
    k.v_lshl_add_u32(a0, a1, 4, a0)
    k.s_movk_i32(s(25), 10 * 1024)
    F = v(48, 16)
    sm, tm = v(64), v(65)
    la, lr = v(66), v(67)
    T5 = [v(68 + i) for i in range(5)]
    k.v_lshlrev_b32(lr, 2, r)
    k.v_lshl_add_u32(la, wv, 5, lr)
    for h in range(2):
        for j in range(4):
            unpack_bf16(k, F[8 * h + 2 * j], F[8 * h + 2 * j + 1], X[h][j])

    def reduce(base):
        dpp_add(k, [sm], "row_ror:8")
        swap_add(k, [sm], [tm], 16)
        swap_add(k, [sm], [tm], 32)
        k.ds_write_b32(la, sm, mods=f"offset:{base}")
        k.waitcnt(lgkm=0)
        k.s_barrier()
        for w in range(5):
            k.ds_read_b32(T5[w], lr, mods=f"offset:{base + w * 32}")
        k.v_add_f32(T5[0], T5[0], T5[1])
        k.v_add_f32(T5[2], T5[2], T5[3])
        k.v_add_f32(T5[0], T5[0], T5[4])
        k.v_add_f32(sm, T5[0], T5[2])

    k.v_add_f32(sm, F[0], F[1])
    k.v_add_f32(tm, F[2], F[3])
    for j in range(4, 16, 2):
        k.v_add_f32(sm, sm, F[j])
        k.v_add_f32(tm, tm, F[j + 1])
    k.v_add_f32(sm, sm, tm)
    reduce(0)
    k.v_mul_f32(sm, f32hex(1.0 / 640), sm)
    for j in range(16):
        k.v_sub_f32(F[j], F[j], sm)
    k.v_mul_f32(sm, F[0], F[0])
    k.v_mul_f32(tm, F[1], F[1])
    for j in range(2, 16, 2):
        k.v_fmac_f32(sm, F[j], F[j])
        k.v_fmac_f32(tm, F[j + 1], F[j + 1])
    k.v_add_f32(sm, sm, tm)
    reduce(256)
    k.v_mov_b32(tm, f32hex(1e-5))
    k.v_fmac_f32(tm, f32hex(1.0 / 640), sm)
    k.v_rsq_f32(tm, tm)
    for j in range(16):
        k.v_mul_f32(F[j], F[j], tm)
    for h in range(2):
        for j in range(4):
            k.v_cvt_pk_f16_f32(X[h][j], F[8 * h + 2 * j], F[8 * h + 2 * j + 1])
    for h in range(2):
        for q in range(2):
            k.buffer_store_dwordx2(X[h][2 * q:2 * q + 2], a0, SH, s(25) if h else 0, mods=f"offen offset:{q * 256}")
    k.s_endpgm()
    k.pop()
    k.label("L_mod_wt")
    k.push(If(lambda sc: sc["p"] == "wt"))
    k.s_load_dwordx2(s(4, 2), s(0, 2), KA_WO)
    k.s_load_dwordx2(s(6, 2), s(0, 2), KA_WD)
    k.s_load_dwordx2(s(8, 2), s(0, 2), KA_WS)
    k.s_sub_u32(s(3), s(2), 376)
    emit_wt(k, s(3))
    k.pop()
    k.label(done)
    k.s_endpgm()
    k.auto_regs()
    k.launch = dict(grid=558, block=512, lds=40960) if wt else dict(grid=376, block=512, lds=1024)
    return k


def emit_uvec(k, blk, done):
    k.s_load_dwordx4(s(8, 4), s(0, 2), KA_WG)
    k.s_load_dwordx2(s(6, 2), s(0, 2), KA_WS)
    t = v(0)
    wv = v(1)
    k.v_lshrrev_b32(wv, 6, t)
    SM = s(12, 4)
    k.waitcnt(lgkm=0)
    srd(k, SM, s(6, 2), SZ_MOD, WS_MOD)
    SW, SU = s(16, 4), s(20, 4)
    ft, mat = s(25), s(26)
    k.s_cmp_ge_u32(blk, 108)
    k.s_cselect_b32(mat, 1, 0)
    k.s_cselect_b32(s(27), 108, 0)
    k.s_cselect_b32(s(4), s(10), s(8))
    k.s_cselect_b32(s(5), s(11), s(9))
    k.s_sub_u32(ft, blk, s(27))
    srd(k, SW, s(4, 2), 640 * 3456)
    srd(k, SU, s(6, 2), SZ_U, WS_U)
    chunk, rg, vo, po = v(2), v(3), v(4), v(5)
    k.v_and_b32(chunk, 1, t)
    k.v_lshrrev_b32(rg, 1, t)
    k.v_mul_u32_u24(vo, 3456, rg)
    k.v_lshl_add_u32(vo, chunk, 4, vo)
    k.s_lshl_b32(s(3), ft, 5)
    k.v_add_u32(vo, s(3), vo)
    k.v_lshlrev_b32(po, 2, rg)
    W = [v(8 + 4 * i, 4) for i in range(5)]
    P1 = [v(28 + i) for i in range(5)]
    P2 = [v(64 + i) for i in range(5)]
    for i in range(5):
        k.s_mov_b32(s(28 + i), hex(i * 128 * 3456))
        k.buffer_load_dwordx4(W[i], vo, SW, s(28 + i), mods="offen")
    k.s_movk_i32(s(33), 2560 * 4)
    k.s_movk_i32(s(34), 1920 * 4)
    for i in range(5):
        k.buffer_load_dword(P1[i], po, SM, s(33), mods=f"offen offset:{i * 512}")
        k.buffer_load_dword(P2[i], po, SM, s(34), mods=f"offen offset:{i * 512}")
    acc = [v(36 + j) for j in range(16)]
    tmp = [v(72 + j) for j in range(16)]
    for i in range(5):
        for j in range(4):
            unpack_bf16(k, tmp[2 * j], tmp[2 * j + 1], W[i][j])
        for j in range(8):
            if i == 0:
                k.v_mul_f32(acc[j], P1[i], tmp[j])
                k.v_mul_f32(acc[8 + j], P2[i], tmp[j])
            else:
                k.v_fmac_f32(acc[j], P1[i], tmp[j])
                k.v_fmac_f32(acc[8 + j], P2[i], tmp[j])
    dpp_add(k, acc, "quad_perm:[2,3,0,1]")
    dpp_add(k, acc, "row_ror:4")
    dpp_add(k, acc, "row_ror:8")
    swap_add(k, acc, tmp, 16)
    swap_add(k, acc, tmp, 32)
    la = v(6)
    k.v_lshlrev_b32(la, 7, wv)
    k.v_lshl_add_u32(la, chunk, 5, la)
    k.ds_write_b128(la, v(36, 4))
    k.ds_write_b128(la, v(40, 4), mods="offset:16")
    k.ds_write_b128(la, v(44, 4), mods="offset:64")
    k.ds_write_b128(la, v(48, 4), mods="offset:80")
    k.v_readfirstlane_b32(s(35), wv)
    k.waitcnt(lgkm=0)
    k.s_barrier()
    k.s_cmp_lg_u32(s(35), 0)
    k.s_cbranch_scc1(done)
    col = v(7)
    k.v_and_b32(col, 31, t)
    k.v_lshlrev_b32(col, 2, col)
    for w in range(4):
        k.ds_read_b32(tmp[w], col, mods=f"offset:{w * 128}")
    k.v_add_f32(tmp[0], tmp[0], tmp[1])
    k.v_add_f32(tmp[2], tmp[2], tmp[3])
    k.v_add_f32(tmp[0], tmp[0], tmp[2])
    k.s_lshl_b32(s(3), ft, 8)
    k.s_lshl_b32(s(36), mat, 7)
    k.s_add_u32(s(3), s(3), s(36))
    k.buffer_store_dword(tmp[0], col, SU, s(3), mods="offen")


def emit_wt(k, wg):
    lane, tmp, vs, va, vd = v(1), v(2), v(3), v(4), v(5)
    k.v_and_b32(lane, 63, v(0))
    k.v_lshrrev_b32(tmp, 6, v(0))
    k.v_readfirstlane_b32(s(10), tmp)
    k.s_lshl_b32(s(11), wg, 3)
    k.s_add_u32(s(11), s(11), s(10))
    k.waitcnt(lgkm=0)
    SS, SD = s(12, 4), s(16, 4)
    cb, ks, tl = s(20), s(21), s(22)
    k.s_sub_u32(s(23), s(11), 1024)
    k.s_mul_hi_u32(s(24), s(23), hex((2 ** 32 + 53) // 54))
    k.s_mul_i32(s(25), s(24), 54)
    k.s_sub_u32(s(25), s(23), s(25))
    k.s_lshr_b32(s(26), s(11), 7)
    k.s_and_b32(s(27), s(11), 127)
    k.s_cmp_lt_u32(s(11), 1024)
    k.s_cselect_b32(cb, s(26), s(24))
    k.s_cselect_b32(ks, s(27), s(25))
    k.s_cselect_b32(tl, s(11), s(23))
    k.s_cselect_b32(SS[0], s(4), s(6))
    k.s_cselect_b32(SS[1], s(5), s(7))
    k.s_mov_b32(SS[2], hex(SZ_WDT))
    k.s_cselect_b32(SS[2], hex(SZ_WOT), SS[2])
    k.s_mov_b32(SS[3], "0x20000")
    k.s_mov_b32(s(28), hex(WS_WDT))
    k.s_cselect_b32(s(28), hex(WS_WOT), s(28))
    k.s_add_u32(SD[0], s(8), s(28))
    k.s_addc_u32(SD[1], s(9), 0)
    k.s_mov_b32(SD[2], SS[2])
    k.s_mov_b32(SD[3], "0x20000")
    k.v_lshrrev_b32(tmp, 1, lane)
    k.v_mul_u32_u24(vs, 1280, tmp)
    k.v_and_b32(tmp, 1, lane)
    k.v_lshl_add_u32(vs, tmp, 4, vs)
    k.s_mul_i32(s(29), ks, 32 * 1280)
    k.s_mul_i32(s(30), cb, 160)
    k.s_add_u32(s(29), s(29), s(30))
    k.s_mul_i32(s(31), s(10), 5120)
    for nt in range(5):
        k.s_add_u32("m0", s(31), nt * 1024 - nt * 32)
        k.buffer_load_dwordx4(vs, SS, s(29), mods=f"offen offset:{nt * 32} lds", tag="T")
    g1, g0, r_, c_ = v(6), v(7), v(8), v(9)
    k.v_bfe_u32(g1, lane, 5, 1)
    k.v_bfe_u32(g0, lane, 4, 1)
    k.v_bfe_u32(r_, lane, 2, 2)
    k.v_and_b32(c_, 3, lane)
    k.v_lshl_add_u32(va, g1, 2, g0)
    k.v_lshl_add_u32(va, va, 2, r_)
    k.v_lshlrev_b32(va, 5, va)
    k.v_lshl_add_u32(va, c_, 3, va)
    k.v_add_u32(va, s(31), va)
    k.v_lshlrev_b32(vd, 4, lane)
    k.s_mul_i32(s(32), tl, 5120)
    k.need("T")
    F = [v(12 + 4 * i, 4) for i in range(5)]
    for nt in range(5):
        for rd in range(2):
            k.ds_read_b64_tr_b16(F[nt][2 * rd:2 * rd + 2], va, mods=f"offset:{nt * 1024 + rd * 256}")
    for nt in range(5):
        if nt == 4:
            k.s_add_u32(s(32), s(32), 4096)
        k.buffer_store_dwordx4(F[nt], vd, SD, s(32), mods=f"offen offset:{(nt % 4) * 1024}")
```

```python
from common import *
from side import SideJobs

MF = "v_mfma_f32_32x32x16_bf16"
SLOT = 16384
PT_LDS = 9 * SLOT
THRESH = 2.0 ** 64


class Sched:
    def __init__(self):
        self.mf = []
        self.fill = {}

    def add_mfma(self, f):
        self.mf.append(f)
        return len(self.mf) - 1

    def at(self, n, f, prio=1):
        self.fill.setdefault(max(n, -1), []).append((prio, f))

    def spread(self, fs, n0, n1, prio=2):
        cnt = n1 - n0
        for i, f in enumerate(fs):
            self.at(n0 + (i * cnt) // len(fs), f, prio)

    def emit(self):
        for n in range(-1, len(self.mf)):
            if n >= 0:
                self.mf[n]()
            for _, f in sorted(self.fill.get(n, []), key=lambda x: x[0]):
                f()
        assert all(k_ < len(self.mf) for k_ in self.fill), max(self.fill)


def gen_k1(k1_la=6, k1_lead=3, k1_st=0, k1_pro=0, k1_pair=1, k1_side=1, k1_init=3):
    LA = int(k1_la)
    LEAD = int(k1_lead)
    XD = 4 * LEAD + 2
    k = Kernel("attn_kernel")
    done = "L_attn_done"
    k.s_cmp_ge_u32(s(2), 256)
    k.s_cbranch_scc1(done)
    ST = Stamps(k, int(k1_st), sbase=58, n=21)
    assert not (int(k1_st) and int(k1_side))
    ST.stamp(real=True)
    ST.stamp()
    k.s_load_dwordx4(s(4, 4), s(0, 2), KA_K)
    k.s_load_dwordx2(s(8, 2), s(0, 2), KA_WQ)
    k.s_load_dwordx2(s(10, 2), s(0, 2), KA_WS)
    SWQ, SK, SV, SXH, SPT, SO = s(12, 4), s(16, 4), s(20, 4), s(24, 4), s(28, 4), s(32, 4)
    sW, sHead, sRb, sWb = s(36), s(37), s(38), s(39)
    SJ = SideJobs(k, sW, 8, 60, 228, 8 * SLOT, s(10, 2))
    if int(k1_side):
        SJ.kernargs()
    sT = [s(40 + i) for i in range(8)]
    sC, sTh = s(48), s(49)
    sKV = s(50)
    sWo = s(51)
    sXo = s(52)
    sOo = [s(53 + i) for i in range(4)]

    t = v(0)
    lane, l15, l4, tmpa, tmpb, hh = v(1), v(2), v(3), v(4), v(5), v(6)
    voW = [v(7), v(8)]
    voK = [v(9), v(10)]
    voV = v(11)
    voX = v(12)
    aPT = v(13)
    voO = v(14)
    nmc, lsum, ts0, ts1 = v(15), v(16), v(17), v(18)
    AK = [v(20 + i) for i in range(8)]
    ATV = [v(28 + i) for i in range(4)]
    QB = v(32, 32)
    OA = v(64, 64)
    SB = [v(128, 16), v(144, 16)]
    PB = [v(160, 8), v(168, 8)]
    NKF, NVF = 5, 5
    KF = [v(176 + 4 * i, 4) for i in range(NKF)]
    VF = [v(196 + 4 * i, 4) for i in range(NVF)]
    TE = [v(216 + i) for i in range(8)]
    ATW = [[v(32 + 4 * r + i) for i in range(4)] for r in range(3)]
    HB = [v(44 + 4 * i, 4) for i in range(3)]
    HT = [v(56 + i) for i in range(8)]
    NWF = 8
    WF = [v(128 + 4 * i, 4) for i in range(NWF)]
    PR = [v(160 + 8 * i, 8) for i in range(3)]
    XF = [v(184 + 4 * i, 4) for i in range(XD)]
    assert 184 + 4 * XD <= 240

    k.v_and_b32(lane, 63, t)
    k.v_lshrrev_b32(tmpa, 6, t)
    k.v_readfirstlane_b32(sW, tmpa)
    k.s_and_b32(sT[0], s(2), 7)
    k.s_lshr_b32(sT[1], s(2), 3)
    k.s_and_b32(sT[2], sT[1], 3)
    k.s_lshl_b32(sHead, sT[0], 2)
    k.s_add_u32(sHead, sHead, sT[2])
    k.s_lshr_b32(sRb, sT[1], 2)
    k.v_and_b32(l15, 15, lane)
    k.v_lshrrev_b32(l4, 4, lane)
    k.v_lshrrev_b32(hh, 5, lane)
    k.s_lshl_b32(sWb, sW, 11)
    k.s_lshl_b32(sT[0], sRb, 3)
    k.s_add_u32(sT[0], sT[0], sW)
    k.s_mul_i32(sT[0], sT[0], 40 * 1024)
    k.v_lshlrev_b32(voX, 4, lane)
    k.v_add_u32(voX, sT[0], voX)
    k.v_lshlrev_b32(tmpa, 2, l4)
    k.v_xor_b32(tmpa, l15, tmpa)
    k.v_lshlrev_b32(tmpa, 4, tmpa)
    k.s_lshl_b32(sT[1], sW, 3)
    k.v_add_u32(tmpb, sT[1], l4)
    k.v_lshl_add_u32(voW[0], tmpb, 13, tmpa)
    k.v_add_u32(voW[1], 4 * 8192 - 1024, voW[0])
    k.v_lshl_add_u32(voV, tmpb, 8, tmpa)
    for j in range(2):
        k.v_add_u32(tmpa, 4 * j, tmpb)
        k.v_and_b32(tmpa, 15, tmpa)
        k.v_xor_b32(tmpa, l15, tmpa)
        k.v_lshlrev_b32(tmpa, 4, tmpa)
        k.v_lshl_add_u32(voK[j], tmpb, 8, tmpa)
    k.waitcnt(lgkm=0)
    if k1_st == "2":
        ST.stamp()
    srd(k, SXH, s(10, 2), SZ_H1, WS_H1)
    srd(k, SPT, s(10, 2), 2560, WS_PT)
    srd(k, SWQ, s(8, 2), 640 * 8192)
    k.s_lshl_b32(sWo, sHead, 8)

    wslot = lambda c: (c if c < 9 else 0) * SLOT
    kslot = lambda i: ((i + 1) % 4) * SLOT
    vslot = lambda i: (4 + i % 4) * SLOT

    def dma1(srd_, vo, sbase, add, slot_addr, tag, j):
        k.s_add_u32(sT[3], sbase, hex(add))
        k.s_add_u32("m0", sWb, hex(slot_addr))
        k.buffer_load_dwordx4(vo, srd_, sT[3], mods=f"offen offset:{1024 * j} lds" if j else "offen lds", tag=tag)

    def dmaW(c, j=None):
        for jj in ([0, 1] if j is None else [j]):
            dma1(SWQ, voW[jj], sWo, c * 64 * 8192, wslot(c), f"W{c}", jj)

    def dmaK(i, j=None):
        for jj in ([0, 1] if j is None else [j]):
            dma1(SK, voK[jj], sKV, i * 64 * 256, kslot(i), f"K{i}", jj)

    def dmaV(i, j=None):
        for jj in ([0, 1] if j is None else [j]):
            dma1(SV, voV, sKV, i * 64 * 256, vslot(i), f"V{i}", jj)

    def loadX(ks):
        if ks % 4 == 0:
            k.s_movk_i32(sXo, ks * 1024) if ks * 1024 < 32768 else k.s_mov_b32(sXo, hex(ks * 1024))
        k.buffer_load_dwordx4(XF[ks % XD], voX, SXH, sXo, mods=f"offen offset:{(ks % 4) * 1024}")

    k.s_mul_hi_u32(sT[0], sW, "0x55555556")
    k.s_mul_i32(sT[0], sT[0], 3)
    k.s_sub_u32(sT[0], sW, sT[0])
    k.s_lshl_b32(sT[0], sT[0], 10)
    k.s_add_u32("m0", sT[0], hex(PT_LDS))
    k.v_lshlrev_b32(tmpa, 4, lane)
    k.buffer_load_dwordx4(tmpa, SPT, sT[0], mods="offen lds", tag="PT")
    INIT = min(int(k1_init), LEAD)

    def chunk_loads(c):
        for ks in range(4 * c, 4 * c + 4):
            loadX(ks)
        dmaW(c)
    for c in range(INIT):
        chunk_loads(c)
    srd(k, SK, s(4, 2), 32 * 2048 * 256)
    srd(k, SV, s(6, 2), 32 * 2048 * 256)
    srd(k, SO, s(10, 2), SZ_O, WS_O)
    k.s_lshl_b32(sKV, sHead, 19)
    k.s_add_u32(sKV, sKV, hex(1536 * 256))
    k.s_mov_b32(sC, f32hex(LOG2E / 128 ** 0.5))
    k.s_mov_b32(sTh, f32hex(THRESH))

    r_, c_, ds_ = v(240), v(241), v(242)
    x0, x1 = v(243), v(244)
    k.v_bfe_u32(r_, lane, 2, 2)
    k.v_and_b32(c_, 3, lane)
    k.v_bfe_u32(ds_, lane, 4, 1)
    k.v_lshl_add_u32(x0, hh, 3, r_)
    k.v_lshlrev_b32(x0, 8, x0)
    k.v_lshl_add_u32(x0, ds_, 5, x0)
    k.v_lshl_add_u32(x1, c_, 3, x0)
    for tt in range(4):
        k.v_xor_b32(tmpa, tt, r_)
        k.v_lshl_add_u32(ATV[tt], tmpa, 6, x1)
        k.v_add_u32(ATV[tt], 4 * SLOT, ATV[tt])
    k.v_and_b32(tmpa, 1, c_)
    k.v_lshrrev_b32(tmpb, 1, c_)
    k.v_lshl_add_u32(tmpa, tmpa, 1, tmpb)
    k.v_lshl_add_u32(x1, tmpa, 3, x0)
    for tt in range(4):
        k.v_xor_b32(tmpa, tt, r_)
        k.v_lshl_add_u32(ATW[0][tt], tmpa, 6, x1)
        k.v_add_u32(ATW[1][tt], 4 * SLOT, ATW[0][tt])
        k.v_add_u32(ATW[2][tt], 8 * SLOT, ATW[0][tt])
    k.v_and_b32(x0, 0x13, lane)
    k.v_bfe_u32(tmpa, lane, 2, 1)
    k.v_lshl_add_u32(x0, tmpa, 3, x0)
    k.v_bfe_u32(tmpa, lane, 3, 1)
    k.v_lshl_add_u32(x0, tmpa, 2, x0)
    k.v_and_b32(x1, 15, x0)
    k.v_xor_b32(x1, hh, x1)
    k.v_lshlrev_b32(x1, 4, x1)
    k.v_lshl_add_u32(AK[0], x0, 8, x1)
    for d in range(1, 8):
        k.v_xor_b32(AK[d], d << 5, AK[0])
    k.v_lshlrev_b32(aPT, 5, hh)
    k.v_add_u32(aPT, hex(PT_LDS), aPT)
    k.s_lshl_b32(sT[0], sRb, 2)
    k.s_lshr_b32(sT[1], sW, 1)
    k.s_add_u32(sT[0], sT[0], sT[1])
    k.s_lshl_b32(sT[0], sT[0], 19)
    k.s_and_b32(sT[1], sW, 1)
    k.s_lshl_b32(sT[1], sT[1], 11)
    k.s_add_u32(sT[0], sT[0], sT[1])
    k.v_lshlrev_b32(voO, 4, l15)
    k.v_lshl_add_u32(voO, hh, 8, voO)
    k.v_lshl_add_u32(voO, ds_, 10, voO)
    k.v_add_u32(voO, sT[0], voO)
    for dt in range(4):
        k.s_lshl_b32(sOo[dt], sHead, 14)
        if dt:
            k.s_add_u32(sOo[dt], sOo[dt], dt * 4096)

    def sync(tags, issues):
        def f():
            k.need(*tags)
            k.s_barrier()
            if k1_st != "2" or ST.i < 14:
                ST.stamp()
            for g in issues:
                g()
        return f

    S = Sched()
    QA = [OA[16 * tt:16 * tt + 16] for tt in range(4)]

    def wread(n):
        ks, tt = divmod(n, 4)
        c, sidx = divmod(ks, 4)
        base = wslot(c)
        reg, off = divmod(base, 4 * SLOT)
        dst = WF[n % NWF]

        def f():
            for rd in range(2):
                k.ds_read_b64_tr_b16(dst[2 * rd:2 * rd + 2], ATW[reg][tt], mods=f"offset:{off + sidx * 4096 + rd * 1024}")
        return f

    def pread(ks):
        def f():
            k.ds_read_b128(PR[ks % 3][0:4], aPT, mods=f"offset:{ks * 64}")
            k.ds_read_b128(PR[ks % 3][4:8], aPT, mods=f"offset:{ks * 64 + 16}")
        return f

    def modulate(ks):
        fs = []
        X_, P_, H_ = XF[ks % XD], PR[ks % 3], HB[ks % 3]
        for j in range(4):
            for hf in range(2):
                fs.append(lambda j=j, hf=hf: k.v_fma_mix_f32(HT[2 * j + hf], X_[j], P_[j], P_[4 + j],
                                                             mods=f"op_sel:[{hf},{hf},{hf}] op_sel_hi:[1,1,1]"))
            fs.append(lambda j=j: k.v_cvt_pk_bf16_f32(H_[j], HT[2 * j], HT[2 * j + 1]))
        return fs

    for n in range(160):
        ks, tt = divmod(n, 4)
        S.add_mfma(lambda n=n, ks=ks, tt=tt: k.op(MF, QA[tt], WF[n % NWF], HB[ks % 3], 0 if ks == 0 else QA[tt]))
    if k1_st == "2":
        def dbg():
            ST.stamp()
            k.need("PT")
            ST.stamp()
            k.v_mov_b32(v(250), XF[0][0])
            ST.stamp()
            k.v_mov_b32(v(250), XF[3][0])
            ST.stamp()
            k.need("W0")
            ST.stamp()
        S.at(-1, dbg, -1)
    S.at(-1, sync(["PT", "W0"], [lambda c=c: chunk_loads(c) for c in range(INIT, LEAD)]), 0)
    S.at(-1, pread(0), 1)
    S.at(-1, pread(1), 1)
    for n in range(160):
        S.at(n - LA, wread(n), 1)
    for f in modulate(0):
        S.at(-1, f, 2)
    for ks in range(1, 40):
        if ks + 1 < 40:
            S.at(4 * (ks - 1), pread(ks + 1), 1)
        S.spread(modulate(ks), 4 * (ks - 1), 4 * ks)
    for c in range(1, 10):
        if int(k1_pair) and c % 2 == 1 and c > 1:
            continue
        tags = [f"W{c}"] + ([f"W{c + 1}"] if (int(k1_pair) and c > 1) else [])
        S.at(16 * c - LA, sync(tags, []), 0)
    for c in range(0, 10 - LEAD):
        cc = c + LEAD
        S.at(16 * c + 1, lambda cc=cc: dmaW(cc, 0), 3)
        S.at(16 * c + 9, lambda cc=cc: dmaW(cc, 1), 3)
        for i in range(4):
            S.at(16 * c + 3 + 4 * i, lambda ks=4 * cc + i: loadX(ks), 3)
    kv = [lambda: dmaK(0, 0), lambda: dmaK(0, 1), lambda: dmaK(1, 0), lambda: dmaK(1, 1), lambda: dmaV(0, 0),
          lambda: dmaV(0, 1), lambda: dmaK(2, 0), lambda: dmaK(2, 1), lambda: dmaV(1, 0), lambda: dmaV(1, 1),
          lambda: dmaV(2, 0), lambda: dmaV(2, 1)]
    p0 = 16 * (10 - LEAD)
    for i, f in enumerate(kv):
        S.at(max(p0 + 1 + 3 * i, (16 * 8 - LA + 1) if i >= 10 else 0), f, 3)

    A0 = 160

    def kread(tile, d, idx):
        base = kslot(tile // 2) + (tile % 2) * 8192
        return lambda: k.ds_read_b128(KF[idx % NKF], AK[d], mods=f"offset:{base}")

    def vread(tile, j, idx):
        kk, dt = divmod(j, 4)
        base = vslot(tile // 2) - 4 * SLOT + (tile % 2) * 8192 + kk * 4096
        dst = VF[idx % NVF]

        def f():
            for rd in range(2):
                k.ds_read_b64_tr_b16(dst[2 * rd:2 * rd + 2], ATV[dt], mods=f"offset:{base + rd * 1024}")
        return f

    kuse, vuse = {}, {}
    kcnt = [0]
    vcnt = [0]

    def add_S(tile, d):
        idx = kcnt[0]
        kcnt[0] += 1
        Sx = SB[tile % 2]
        n = S.add_mfma(lambda: k.op(MF, Sx, KF[idx % NKF], QB[4 * d:4 * d + 4], 0 if d == 0 else Sx))
        kuse[idx] = n
        S.at(max(n - LA, kuse.get(idx - NKF, -1)), kread(tile, d, idx), 1)

    def add_PV(tile, j):
        idx = vcnt[0]
        vcnt[0] += 1
        kk, dt = divmod(j, 4)
        O_ = OA[16 * dt:16 * dt + 16]
        first = (tile == 0 and kk == 0)
        n = S.add_mfma(lambda: k.op(MF, O_, VF[idx % NVF], PB[tile % 2][4 * kk:4 * kk + 4], 0 if first else O_))
        vuse[idx] = n
        S.at(max(n - LA, vuse.get(idx - NVF, -1)), vread(tile, j, idx), 1)

    def softmax(tile, K=k):
        Sx, Px = SB[tile % 2], PB[tile % 2]
        A, B, C = [], [], []
        for i in range(0, 16, 2):
            e0, e1 = TE[i % 8], TE[(i + 1) % 8]
            A.append([lambda i=i, e0=e0: k.v_fma_f32(e0, Sx[i], sC, nmc),
                      lambda i=i, e1=e1: k.v_fma_f32(e1, Sx[i + 1], sC, nmc)])
            B.append([lambda e0=e0: k.v_exp_f32(e0, e0), lambda e1=e1: k.v_exp_f32(e1, e1)])
            c = []
            if i == 0:
                c.append(lambda e0=e0, e1=e1: k.v_add_f32(ts0, e0, e1))
            elif i == 2:
                c.append(lambda e0=e0, e1=e1: k.v_add_f32(ts1, e0, e1))
            else:
                c.append(lambda e0=e0: k.v_add_f32(ts0, ts0, e0))
                c.append(lambda e1=e1: k.v_add_f32(ts1, ts1, e1))
            c.append(lambda i=i, e0=e0, e1=e1: k.v_cvt_pk_bf16_f32(Px[i // 2], e0, e1))
            C.append(c)
        fs = []
        for stp in range(10):
            if stp < 8:
                fs += A[stp]
            if 1 <= stp < 9:
                fs += B[stp - 1]
            if stp >= 2:
                fs += C[stp - 2]
        fs.append(lambda: k.v_add_f32(ts0, ts0, ts1))
        return fs

    def rowmax(tile, dst, tmp):
        Sx = SB[tile % 2]
        fs = [lambda: k.v_max3_f32(dst, Sx[0], Sx[1], Sx[2]),
              lambda: k.v_max3_f32(tmp, Sx[3], Sx[4], Sx[5])]
        for i in range(6, 14, 4):
            fs.append(lambda i=i: k.v_max3_f32(dst, dst, Sx[i], Sx[i + 1]))
            fs.append(lambda i=i: k.v_max3_f32(tmp, tmp, Sx[i + 2], Sx[i + 3]))
        fs.append(lambda: k.v_max3_f32(dst, dst, Sx[14], Sx[15]))
        fs.append(lambda: k.v_max_f32(dst, dst, tmp))
        fs.append(lambda: k.v_mov_b32(tmp, dst))
        fs.append(lambda: k.v_permlane32_swap_b32(dst, tmp))
        fs.append(lambda: k.v_max_f32(dst, dst, tmp))
        return fs

    def check(tile):
        cold = f"L_attn_cold{tile}"
        back = f"L_attn_back{tile}"

        def f():
            k.v_cmp_nge_f32("vcc", sTh, ts0)
            k.s_cbranch_vccnz(cold)
            k.label(back)
            k.v_add_f32(lsum, lsum, ts0)
            k.cold()
            k.label(cold)
            k.nop(16)
            mx, tm = TE[0], TE[1]
            for g in rowmax(tile, mx, tm):
                g()
            k.v_mul_f32(mx, sC, mx)
            k.v_max_f32(mx, mx, neg(nmc))
            k.v_sub_f32(tm, neg(nmc), mx)
            k.v_exp_f32(tm, tm)
            k.v_sub_f32(nmc, 0, mx)
            for i in range(64):
                k.v_mul_f32(OA[i], OA[i], tm)
            k.v_mul_f32(lsum, lsum, tm)
            for g in softmax(tile):
                g()
            k.nop(4)
            k.s_branch(back)
            k.pop()
        return f

    reads = []
    s0 = []
    for d in range(8):
        add_S(0, d)
    S.at(A0 - LA, sync(["K0"], []), 0)
    S.at(A0 - LA + 2, lambda: dmaV(3, 0), 3)
    S.at(A0 - LA + 6, lambda: dmaV(3, 1), 3)
    cv = []
    for d in range(8):
        tt, half = divmod(d, 2)
        for j in range(4):
            cv.append(lambda d=d, tt=tt, half=half, j=j: k.v_cvt_pk_bf16_f32(
                QB[4 * d + j], QA[tt][8 * half + 2 * j], QA[tt][8 * half + 2 * j + 1]))
    for i, f in enumerate(cv):
        d = i // 4
        S.at(159 if d < 4 else A0 + d - 4, f, 2)

    n0 = len(S.mf)
    for d in range(8):
        add_S(1, d)
    mx, tm = v(224), v(225)
    fs = rowmax(0, mx, tm)
    fs.append(lambda: k.v_mul_f32(nmc, sC, mx))
    fs.append(lambda: k.v_sub_f32(nmc, 0, nmc))
    fs += softmax(0)
    fs.append(lambda: k.v_mov_b32(lsum, ts0))
    S.spread(fs, n0 + 1, n0 + 8)

    tstart = {}
    for tile in range(1, 16):
        n0 = len(S.mf)
        tstart[tile] = n0
        order = []
        if tile + 1 < 16:
            order = [("S", 0), ("S", 1)]
            for j in range(6):
                order += [("P", j), ("S", j + 2)]
            order += [("P", 6), ("P", 7)]
        else:
            order = [("P", j) for j in range(8)]
        for kind, j in order:
            add_S(tile + 1, j) if kind == "S" else add_PV(tile - 1, j)
        n1 = len(S.mf)
        fs = softmax(tile)
        S.spread(fs, n0 + (1 if tile + 1 < 16 else 0), n1)
        S.at(n1 - 1, check(tile), 3)
        if tile % 2 == 1:
            i = (tile - 1) // 2
            tags = [f"K{i + 1}", f"V{i}"] if i + 1 < 8 else [f"V{i}"]
            iss = []
            if i + 3 < 8:
                iss += [lambda i=i: dmaK(i + 3, 0), lambda i=i: dmaK(i + 3, 1)]
            if 2 <= i and i + 2 < 8:
                iss += [lambda i=i: dmaV(i + 2, 0), lambda i=i: dmaV(i + 2, 1)]
            S.at(n0 - LA, sync(tags, []), 0)
            for q, f in enumerate(iss):
                S.at(n0 - LA + 2 + 6 * q, f, 3)
    if int(k1_side):
        S.spread(SJ.wt_setup(lane), tstart[1], tstart[2], 4)
        for i in range(4):
            S.at(tstart[2] + 3 + 4 * i, SJ.wt_dma(i), 4)
            S.at(tstart[4] + 2 + 2 * i, SJ.wt_read(i, first=(i == 0)), 4)
            S.at(tstart[5] + 1 + 3 * i, SJ.wt_store(i), 4)
        S.spread(SJ.u_setup(t), tstart[6] - 3, tstart[6] + 8, 4)
        for i in range(5):
            S.at(tstart[6] + 9 + 3 * i if i < 2 else tstart[6 + i] - 1, SJ.u_load(i), 4)
            S.spread(SJ.u_fma(i), tstart[8 + i] - 12, tstart[8 + i] - 2, 4)
        S.spread(SJ.u_reduce(), tstart[12], tstart[13] - LA - 1, 4)
        S.at(tstart[13] - LA - 1, lambda: k.waitcnt(lgkm=0), 5)
        S.spread(SJ.u_final(lane), tstart[13], tstart[14], 4)
    nf = len(S.mf)
    for dt in range(4):
        for kk in range(2):
            add_PV(15, kk * 4 + dt)
    fin = [lambda: k.v_mov_b32(tm, lsum), lambda: k.v_permlane32_swap_b32(lsum, tm),
           lambda: k.v_add_f32(lsum, lsum, tm), lambda: k.v_rcp_f32(lsum, lsum)]
    S.spread(fin, nf, nf + 2)
    OUT = [v(128 + 4 * i, 4) for i in range(8)]

    def epi(dt):
        fs = []
        for half in range(2):
            o = OUT[2 * dt + half]
            for j in range(4):
                a_, b_ = OA[16 * dt + 8 * half + 2 * j], OA[16 * dt + 8 * half + 2 * j + 1]
                fs.append(lambda a_=a_: k.v_mul_f32(a_, a_, lsum))
                fs.append(lambda b_=b_: k.v_mul_f32(b_, b_, lsum))
                fs.append(lambda a_=a_, b_=b_, o=o, j=j: k.v_cvt_pk_bf16_f32(o[j], a_, b_))
            fs.append(lambda o=o, half=half: k.buffer_store_dwordx4(o, voO, SO, sOo[dt], mods=f"offen offset:{half * 512} sc1"))
        return fs
    S.spread(epi(0), nf + 4, nf + 6)
    S.spread(epi(1), nf + 6, nf + 8)
    S.emit()
    ST.stamp()
    for dt in (2, 3):
        for f in epi(dt):
            f()
    ST.stamp()
    k.waitcnt(vm=0)
    ST.stamp()
    ST.stamp(real=True)
    ST.dump(s(10, 2), sW, [v(1), v(2)], s(12, 4))
    k.label(done)
    k.s_endpgm()
    k.auto_regs()
    k.launch = dict(grid=256, block=512, lds=160 * 1024)
    return k
```

```python
from common import *


class SideJobs:
    def __init__(self, k, sW, nwaves, sregs, vregs, lds_base, ws_pair, extra=None, sc1=False):
        self.k, self.sW, self.nw = k, sW, nwaves
        self.sb, self.vb, self.lds, self.ws = sregs, vregs, lds_base, ws_pair
        self.sc = " sc1" if sc1 else ""
        self.extra = extra or (v(vregs - 1), v(vregs - 2))
        self.PW = s(sregs + 24, 4)
        self.PG = s(sregs + 28, 4)

    def kernargs(self):
        k = self.k
        k.s_load_dwordx2(self.PW[0:2], s(0, 2), KA_WO)
        k.s_load_dwordx2(self.PW[2:4], s(0, 2), KA_WD)
        k.s_load_dwordx4(self.PG, s(0, 2), KA_WG)

    @staticmethod
    def group(fs):
        out = []
        run = []
        for kind, f in fs:
            if kind == 's':
                run.append(f)
            else:
                if run:
                    out.append(lambda run=run: [g() for g in run])
                    run = []
                out.append(f)
        if run:
            out.append(lambda run=run: [g() for g in run])
        return out

    def wt_setup(self, lane, rep=0, nrep=1):
        k, sb, vb = self.k, self.sb, self.vb
        SS, SD = s(sb, 4), s(sb + 4, 4)
        P = self.PW
        J, T1, T2, T3, ks, nq, nks, dst = [s(sb + 12 + i) for i in range(8)]
        self.SS, self.SD, self.sSrc, self.sDst = SS, SD, T1, dst
        self.vs, self.va, self.vd = v(vb), v(vb + 1), v(vb + 2)
        tmp = v(vb + 3)
        fs = []
        A = fs.append
        A(('s', lambda: k.s_mul_i32(J, s(2), self.nw)))
        A(('s', lambda: k.s_add_u32(J, J, self.sW)))
        if nrep > 1:
            A(('s', lambda: k.s_mul_i32(J, J, nrep)))
            A(('s', lambda: k.s_add_u32(J, J, rep)))
        A(('s', lambda: k.s_sub_u32(T1, J, 1280)))
        A(('s', lambda: k.s_cmp_lt_u32(J, 1280)))
        A(('s', lambda: k.s_cselect_b32(T1, J, T1)))
        A(('s', lambda: k.s_cselect_b32(nks, 128, 54)))
        A(('s', lambda: k.s_mov_b32(T2, hex(SZ_WDT))))
        A(('s', lambda: k.s_cselect_b32(T2, hex(SZ_WOT), T2)))
        A(('s', lambda: k.s_mov_b32(T3, hex(WS_WDT))))
        A(('s', lambda: k.s_cselect_b32(T3, hex(WS_WOT), T3)))
        A(('s', lambda: k.s_cselect_b32(SS[0], P[0], P[2])))
        A(('s', lambda: k.s_cselect_b32(SS[1], P[1], P[3])))
        A(('s', lambda: k.s_cmp_lt_u32(J, 1820)))
        A(('s', lambda: k.s_cselect_b32(SS[2], T2, 0)))
        A(('s', lambda: k.s_mov_b32(SS[3], "0x20000")))
        A(('s', lambda: k.s_add_u32(SD[0], self.ws[0], T3)))
        A(('s', lambda: k.s_addc_u32(SD[1], self.ws[1], 0)))
        A(('s', lambda: k.s_mov_b32(SD[2], SS[2])))
        A(('s', lambda: k.s_mov_b32(SD[3], "0x20000")))
        A(('s', lambda: k.s_mul_hi_u32(ks, T1, hex((2 ** 32 + 9) // 10))))
        A(('s', lambda: k.s_mul_i32(nq, ks, 10)))
        A(('s', lambda: k.s_sub_u32(nq, T1, nq)))
        self.ks, self.nq, self.nks = ks, nq, nks
        A(('s', lambda: k.s_mul_i32(T1, ks, 32 * 1280)))
        A(('s', lambda: k.s_lshl_b32(T2, nq, 7)))
        A(('s', lambda: k.s_add_u32(T1, T1, T2)))
        A(('v', lambda: k.v_lshrrev_b32(tmp, 3, lane)))
        A(('v', lambda: k.v_mul_u32_u24(self.vs, 1280, tmp)))
        A(('v', lambda: k.v_and_b32(tmp, 7, lane)))
        A(('v', lambda: k.v_lshl_add_u32(self.vs, tmp, 4, self.vs)))
        A(('v', lambda: k.v_lshrrev_b32(self.va, 2, lane)))
        A(('v', lambda: k.v_lshlrev_b32(self.va, 7, self.va)))
        A(('v', lambda: k.v_and_b32(tmp, 3, lane)))
        A(('v', lambda: k.v_lshl_add_u32(self.va, tmp, 3, self.va)))
        A(('s', lambda: k.s_lshl_b32(T3, self.sW, 12)))
        A(('s', lambda: k.s_add_u32(T3, T3, hex(self.lds))))
        A(('v', lambda: k.v_add_u32(self.va, T3, self.va)))
        A(('v', lambda: k.v_lshlrev_b32(self.vd, 4, lane)))
        self.sLds = T3
        return self.group(fs)

    def wt_dma(self, i):
        k = self.k
        T = s(self.sb + 20)

        def f():
            k.s_add_u32("m0", self.sLds, i * 1024)
            k.s_add_u32(T, self.sSrc, i * 8 * 1280)
            k.buffer_load_dwordx4(self.vs, self.SS, T, mods="offen lds", tag="WT")
        return f

    def wt_read(self, i, first=False):
        k = self.k
        F = v(self.vb + 4 + 4 * i, 4)

        def f():
            if first:
                k.need("WT")
            for rd in range(2):
                k.ds_read_b64_tr_b16(F[2 * rd:2 * rd + 2], self.va, mods=f"offset:{i * 32 + rd * 2048}")
        return f

    def wt_store(self, i):
        k = self.k
        F = v(self.vb + 4 + 4 * i, 4)
        T, U_, cb = s(self.sb + 20), s(self.sb + 21), s(self.sb + 22)

        def f():
            k.s_lshl_b32(T, self.nq, 2)
            k.s_add_u32(T, T, i)
            k.s_mul_i32(cb, T, 52429)
            k.s_lshr_b32(cb, cb, 18)
            k.s_mul_i32(U_, cb, 5)
            k.s_sub_u32(T, T, U_)
            k.s_mul_i32(U_, cb, self.nks)
            k.s_add_u32(U_, U_, self.ks)
            k.s_mul_i32(U_, U_, 5)
            k.s_add_u32(T, T, U_)
            k.s_lshl_b32(T, T, 10)
            k.buffer_store_dwordx4(F, self.vd, self.SD, T, mods="offen sc1", tag="SJ")
        return f

    def u_setup(self, tid):
        k, sb, vb = self.k, self.sb, self.vb
        SW_, SM, SU = s(sb, 4), s(sb + 4, 4), s(sb + 8, 4)
        P = self.PG
        ft, mat, T, sP = [s(sb + 16 + i) for i in range(4)]
        self.SWu, self.SMu, self.SUu, self.ft, self.mat, self.sP = SW_, SM, SU, ft, mat, sP
        self.uvo, self.upo, self.ula = v(vb), v(vb + 1), v(vb + 2)
        tmp = v(vb + 3)
        half = self.nw // 2
        fs = []
        A = fs.append
        A(('s', lambda: k.s_cmp_ge_u32(s(2), 108)))
        A(('s', lambda: k.s_cselect_b32(mat, 1, 0)))
        A(('s', lambda: k.s_cselect_b32(T, 108, 0)))
        A(('s', lambda: k.s_cselect_b32(SW_[0], P[2], P[0])))
        A(('s', lambda: k.s_cselect_b32(SW_[1], P[3], P[1])))
        A(('s', lambda: k.s_sub_u32(ft, s(2), T)))
        A(('s', lambda: k.s_cmp_lt_u32(s(2), 216)))
        A(('s', lambda: k.s_cselect_b32(SW_[2], hex(640 * 3456), 0)))
        A(('s', lambda: k.s_cselect_b32(SU[2], hex(SZ_U), 0)))
        A(('s', lambda: k.s_mov_b32(SW_[3], "0x20000")))
        A(('s', lambda: k.s_mov_b32(SM[0], self.ws[0])))
        A(('s', lambda: k.s_mov_b32(SM[1], self.ws[1])))
        A(('s', lambda: k.s_mov_b32(SM[2], hex(SZ_MOD))))
        A(('s', lambda: k.s_mov_b32(SM[3], "0x20000")))
        A(('s', lambda: k.s_add_u32(SU[0], self.ws[0], hex(WS_U))))
        A(('s', lambda: k.s_addc_u32(SU[1], self.ws[1], 0)))
        A(('s', lambda: k.s_mov_b32(SU[3], "0x20000")))
        A(('s', lambda: k.s_cmp_lt_u32(self.sW, half)))
        A(('s', lambda: k.s_movk_i32(T, 1920 * 4)))
        A(('s', lambda: k.s_cselect_b32(sP, 2560 * 4, T)))
        A(('v', lambda: k.v_bfe_u32(tmp, tid, 1, 7 if self.nw == 8 else 6)))
        A(('v', lambda: k.v_mul_u32_u24(self.uvo, 3456, tmp)))
        A(('v', lambda: k.v_lshlrev_b32(self.upo, 2, tmp)))
        A(('v', lambda: k.v_and_b32(tmp, 1, tid)))
        A(('v', lambda: k.v_lshl_add_u32(self.uvo, tmp, 4, self.uvo)))
        A(('s', lambda: k.s_lshl_b32(T, ft, 5)))
        A(('v', lambda: k.v_add_u32(self.uvo, T, self.uvo)))
        A(('s', lambda: k.s_lshl_b32(T, self.sW, 6)))
        A(('s', lambda: k.s_add_u32(T, T, hex(self.lds))))
        A(('v', lambda: k.v_lshlrev_b32(self.ula, 5, tmp)))
        A(('v', lambda: k.v_add_u32(self.ula, T, self.ula)))
        return self.group(fs)

    def ubuf(self, i):
        vb = self.vb
        return (v(vb + 4, 4), self.extra[0]) if i % 2 == 0 else (v(vb + 24, 4), self.extra[1])

    def u_load(self, i):
        k, vb = self.k, self.vb
        W, Pm = self.ubuf(i)
        T = s(self.sb + 20)

        def f():
            k.s_mov_b32(T, hex(i * 16 * self.nw * 3456))
            k.buffer_load_dwordx4(W, self.uvo, self.SWu, T, mods="offen")
            k.buffer_load_dword(Pm, self.upo, self.SMu, self.sP, mods=f"offen offset:{i * 64 * self.nw}" + self.sc)
        return f

    def u_fma(self, i):
        k, vb = self.k, self.vb
        W, Pm = self.ubuf(i)
        acc = [v(vb + 8 + j) for j in range(8)]
        tmp = [v(vb + 16 + j) for j in range(8)]
        fs = []
        for j in range(4):
            fs.append(lambda j=j: k.v_lshlrev_b32(tmp[2 * j], 16, W[j]))
            fs.append(lambda j=j: k.v_and_b32(tmp[2 * j + 1], "0xffff0000", W[j]))
        for j in range(8):
            if i == 0:
                fs.append(lambda j=j: k.v_mul_f32(acc[j], Pm, tmp[j]))
            else:
                fs.append(lambda j=j: k.v_fmac_f32(acc[j], Pm, tmp[j]))
        return fs

    def u_reduce(self):
        k, vb = self.k, self.vb
        acc = [v(vb + 8 + j) for j in range(8)]
        tmp = [v(vb + 16 + j) for j in range(8)]
        fs = []
        for ctrl in ("quad_perm:[2,3,0,1]", "row_ror:4", "row_ror:8"):
            for a_ in acc:
                fs.append(lambda a_=a_, ctrl=ctrl: k.v_add_f32_dpp(a_, a_, a_, mods=f"{ctrl} row_mask:0xf bank_mask:0xf"))
        for op in ("v_permlane16_swap_b32", "v_permlane32_swap_b32"):
            for a_, t_ in zip(acc, tmp):
                fs.append(lambda a_=a_, t_=t_: k.v_mov_b32(t_, a_))
            for a_, t_ in zip(acc, tmp):
                fs.append(lambda a_=a_, t_=t_, op=op: k.op(op, a_, t_))
            for a_, t_ in zip(acc, tmp):
                fs.append(lambda a_=a_, t_=t_: k.v_add_f32(a_, a_, t_))
        fs.append(lambda: k.ds_write_b128(self.ula, v(vb + 8, 4)))
        fs.append(lambda: k.ds_write_b128(self.ula, v(vb + 12, 4), mods="offset:16"))
        return fs

    def u_final(self, lane):
        k, vb = self.k, self.vb
        half = self.nw // 2
        col, ad = v(vb), v(vb + 1)
        tmp = [v(vb + 16 + j) for j in range(8)]
        T, T2 = s(self.sb + 20), s(self.sb + 21)
        fs = []
        A = fs.append
        A(lambda: k.v_and_b32(col, 31, lane))
        A(lambda: k.v_lshlrev_b32(col, 2, col))
        A(lambda: k.v_bfe_u32(ad, lane, 4, 1))
        A(lambda: k.v_mul_u32_u24(ad, 64 * half - 64, ad))
        A(lambda: k.v_add_u32(ad, ad, col))
        A(lambda: k.v_add_u32(ad, hex(self.lds), ad))
        for w in range(half):
            A(lambda w=w: k.ds_read_b32(tmp[w], ad, mods=f"offset:{w * 64}"))
        for w in range(1, half):
            A(lambda w=w: k.v_add_f32(tmp[0], tmp[0], tmp[w]))
        A(lambda: k.s_lshl_b32(T, self.ft, 8))
        A(lambda: k.s_lshl_b32(T2, self.mat, 7))
        A(lambda: k.s_add_u32(T, T, T2))
        A(lambda: k.buffer_store_dword(tmp[0], col, self.SUu, T, mods="offen" + self.sc, tag="SJ"))
        return fs
```

```python
from common import *
from k1 import Sched
from side import SideJobs

MF = "v_mfma_f32_16x16x32_bf16"
SLOT = 16384
PT_LDS = 9 * SLOT
P0_LDS = 150 * 1024
X1_LDS = 132 * 1024
THRESH = 2.0 ** 64
NAME = "adaLN_cond__sliding_block_cached__swiglu_ffn__prompt_kernel"

sW = s(93)
WS = s(94, 2)
DBGP = s(96, 2)
EPOCH = s(98)
SDBG = s(56, 4)
SF = s(4, 4)
WS_FLG = 0x40000
FSH = 7
FPH = 512 << FSH
FSZ = 6 * FPH
F_X, F_M, F_O, F_Y, F_A, F_S = range(6)
D_M2, D_S = 128, 144


class Mega:
    def __init__(self, opts):
        self.o = opts
        scen = []
        for w in (0, 1, 2, 3, 4, 5):
            role = "ln" if w < 2 else "modf" if w == 2 else "mod"
            act = "long" if w < 2 else "short" if w < 4 else "idle"
            for p3 in (1, 0):
                for odd in (0, 1):
                    scen.append(dict(w=w, role=role, act=act, p3=p3, odd=odd, w0=(w == 0), w5=(role == "modf")))
        self.k = Kernel(NAME, scenarios=scen)
        self.nst = 0

    def opt(self, n, d):
        return int(self.o.get(n, d))

    def stamp(self, src=None):
        if not self.opt("st", 0):
            return
        k = self.k
        if src is None:
            k.s_memrealtime(s(100, 2))
        else:
            k.waitcnt(lgkm=0)
            k.s_mov_b32(s(100), s(src))
        srd(k, s(4, 4), WS, 0x100000, WS_DBG)
        k.s_lshl_b32(s(3), s(2), 3)
        k.s_add_u32(s(3), s(3), sW)
        k.s_lshl_b32(s(3), s(3), 7)
        k.v_mov_b32(v(255), 0)
        k.waitcnt(lgkm=0)
        k.v_mov_b32(v(254), s(100))
        k.buffer_store_dword(v(254), v(255), s(4, 4), s(3), mods=f"offen offset:{4 * self.nst}")
        self.nst += 1

    def flag_off(self, dst, ph, line, idx):
        k = self.k
        k.s_lshl_b32(dst, line, 6)
        k.s_add_u32(dst, dst, idx)
        k.s_lshl_b32(dst, dst, FSH)
        k.s_add_u32(dst, dst, hex(ph * FPH))

    def set_flag(self, off, va, vb):
        k = self.k
        srd(k, SF, WS, FSZ, WS_FLG)
        k.s_mov_b64("exec", 1)
        k.v_mov_b32(va, EPOCH)
        k.v_mov_b32(vb, 0)
        k.buffer_store_dword(va, vb, SF, off, mods="offen sc1")
        k.s_mov_b64("exec", -1)

    def signal(self, off, va, vb):
        k = self.k
        k.s_barrier()
        skip = k.newlabel()
        k.s_cmp_lg_u32(sW, 0)
        k.s_cbranch_scc1(skip)
        k.push(If(lambda sc: sc["w0"]))
        self.set_flag(off, va, vb)
        k.pop()
        k.label(skip)

    def count(self, off, va, vb):
        k = self.k
        skip = k.newlabel()
        k.s_cmp_lg_u32(sW, 0)
        k.s_cbranch_scc1(skip)
        k.push(If(lambda sc: sc["w0"]))
        k.s_mov_b64("exec", 1)
        k.v_mov_b32(va, 1)
        k.v_mov_b32(vb, 0)
        k.buffer_atomic_add(va, vb, SDBG, off, mods="offen")
        k.s_mov_b64("exec", -1)
        k.pop()
        k.label(skip)

    def poll(self, addrs, dsts, srd_, cmp):
        k = self.k
        out = k.newlabel()
        k.s_mov_b32(s(3), 60000)
        L = k.label()
        for a_, d_ in zip(addrs, dsts):
            k.buffer_load_dword(d_, a_, srd_, 0, mods="offen sc1")
        for i, d_ in enumerate(dsts):
            cmp(d_)
            if len(dsts) > 1:
                if i == 0:
                    k.s_mov_b64(s(100, 2), "vcc")
                else:
                    k.s_or_b64(s(100, 2), s(100, 2), "vcc")
        if len(dsts) > 1:
            k.s_mov_b64("vcc", s(100, 2))
        k.s_cbranch_vccz(out)
        k.s_sleep(self.opt("sleep", 1))
        k.s_sub_u32(s(3), s(3), 1)
        k.s_cmp_lg_u32(s(3), 0)
        k.s_cbranch_scc1(L)
        k.label(out)

    def wait(self, setup, addrs, dsts, counters=None, pw=0):
        k = self.k
        skip = k.newlabel()
        k.s_cmp_lg_u32(sW, pw)
        k.s_cbranch_scc1(skip)
        k.push(If(lambda sc: sc["w"] == pw))
        setup()
        if counters is None:
            srd(k, SF, WS, FSZ, WS_FLG)
            self.poll(addrs, dsts, SF, lambda d_: k.v_cmp_ne_u32("vcc", EPOCH, d_))
        else:
            self.poll(addrs, dsts, SDBG, lambda d_: k.v_cmp_gt_u32("vcc", counters, d_))
        k.pop()
        k.label(skip)
        k.s_barrier()

    def get_epoch(self, va, vb):
        k = self.k
        have, slow = k.newlabel(), k.newlabel()
        k.v_cmp_eq_u32("vcc", 0, vb)
        k.s_cbranch_vccnz(slow)
        k.label(have)
        k.v_readfirstlane_b32(EPOCH, vb)
        k.cold()
        k.label(slow)
        k.v_mov_b32(va, 0)
        self.poll([va], [vb], SDBG, lambda d_: k.v_cmp_eq_u32("vcc", 0, d_))
        k.s_branch(have)
        k.pop()

    def p01(self):
        k = self.k
        LA = self.opt("k1_la", 12)
        LEAD = self.opt("k1_lead", 3)
        XD = 2 * LEAD + 1
        NQ, NW, ND = 2, 8, 2
        KS, CH = 8 * NQ, 16 * NQ
        if self.opt("st", 0):
            k.s_memrealtime(s(82, 2))
        k.s_load_dwordx4(s(4, 4), s(0, 2), KA_K)
        k.s_load_dwordx2(s(8, 2), s(0, 2), KA_WQ)
        k.s_load_dwordx4(s(56, 4), s(0, 2), KA_DBG)
        k.s_load_dwordx4(s(60, 4), s(0, 2), KA_C)
        k.s_load_dwordx2(s(64, 2), s(0, 2), KA_X)
        SWQ, SK, SV, SXH, SPT, SO = s(12, 4), s(16, 4), s(20, 4), s(24, 4), s(28, 4), s(32, 4)
        sHead, sRb, sWb = s(37), s(38), s(39)
        SJ = SideJobs(k, sW, NW, 60, 228, 8 * SLOT, WS, extra=(v(10), v(11)), sc1=True)
        SJ.kernargs()
        sT = [s(40 + i) for i in range(8)]
        sC, sTh, sKV, sWo, sXo, sXb = s(48), s(49), s(50), s(51), s(52), s(53)
        sOo = s(54)
        t = v(0)
        lane = v(1)
        l15, l4, tmpa, tmpb, x0, x1 = [v(196 + i) for i in range(6)]
        voW = [v(2), v(3)]
        voK = [v(4), v(5)]
        voV = [v(6), v(7)]
        vl16, aPT = v(8), v(9)
        lsum = [v(12 + i) for i in range(NQ)]
        ts = [v(14 + i) for i in range(NQ)]
        AT = [v(16 + i) for i in range(8)]
        AK = [v(24 + i) for i in range(8)]
        tall = v(32)
        NM = v(36, 8)
        TE = [v(44 + i) for i in range(8)]
        QB = v(52, 32)
        SB = [v(84, 16), v(100, 16)]
        PB = [v(116, 8), v(124, 8)]
        XF = [v(52 + 8 * i, 8) for i in range(XD)]
        HB = [v(116, 8), v(124, 8)]
        PR = [v(228, 8), v(236, 8)]
        HT = [v(244 + i) for i in range(8)]
        ACC = v(132, 64)
        acc = lambda tt, qt: ACC[(tt * NQ + qt) * 4:(tt * NQ + qt) * 4 + 4]
        NWF = 8
        WF = [v(196 + 4 * i, 4) for i in range(NWF)]
        NKF = NVF = 4
        KF = WF[:4]
        VF = WF[4:]

        k.v_and_b32(lane, 63, t)
        k.v_lshrrev_b32(tmpa, 6, t)
        k.v_readfirstlane_b32(sW, tmpa)
        B = 52
        r, c, row, vo, a0, a1 = [v(B + i) for i in range(6)]
        X = [v(B + 8 + 4 * i, 4) for i in range(5)]
        F = v(B + 28, 40)
        sm, tm = v(B + 6), v(B + 7)
        SX, SH, SC_, SWM, SM = s(68, 4), s(72, 4), s(68, 4), s(72, 4), s(76, 4)
        cbk = s(66)
        modw, p0j = k.newlabel(), k.newlabel()
        k.s_cmp_ge_u32(sW, 2)
        k.s_cbranch_scc1(modw)
        k.push(If(lambda sc: sc["role"] == "ln"))
        k.v_and_b32(r, 3, lane)
        k.v_lshrrev_b32(c, 2, lane)
        k.s_lshl_b32(s(3), s(2), 1)
        k.s_add_u32(s(3), s(3), sW)
        k.s_lshl_b32(s(3), s(3), 2)
        k.v_add_u32(row, s(3), r)
        k.v_mul_u32_u24(vo, 1280, row)
        k.v_lshl_add_u32(vo, c, 4, vo)
        k.waitcnt(lgkm=0)
        srd(k, SX, s(64, 2), SZ_H1)
        for i in range(5):
            k.buffer_load_dwordx4(X[i], vo, SX, 0, mods=f"offen offset:{i * 256}")
        srd(k, SH, s(58, 2), SZ_H1, WS_H1)
        k.v_lshrrev_b32(a0, 4, row)
        k.v_mul_u32_u24(a0, 20, a0)
        k.v_lshrrev_b32(a1, 2, c)
        k.v_add_lshl_u32(a0, a0, a1, 10)
        k.v_and_b32(a1, 3, c)
        k.v_lshl_add_u32(a0, a1, 8, a0)
        k.v_and_b32(a1, 15, row)
        k.v_lshl_add_u32(a0, a1, 4, a0)
        k.s_branch(p0j)
        k.pop()
        k.label(modw)
        k.push(If(lambda sc: sc["role"] != "ln"))
        NR = 4
        MW = [v(B + 8 + 4 * i, 4) for i in range(NR)]
        MC = [v(B + 36 + i) for i in range(NR)]
        ME = [v(B + 44 + i) for i in range(NR)]
        macc = [v(B + 52 + j) for j in range(8)]
        mtmp = [v(B + 60 + j) for j in range(8)]
        tp, chunk, rg, voffw, voffc = r, c, row, vo, a0
        k.s_and_b32(cbk, s(2), 7)
        k.s_mul_i32(cbk, cbk, 30)
        k.s_lshr_b32(s(3), s(2), 3)
        k.s_add_u32(cbk, cbk, s(3))
        k.v_subrev_u32(tp, 128, t)
        k.v_and_b32(chunk, 1, tp)
        k.v_lshrrev_b32(rg, 1, tp)
        k.v_mul_u32_u24(voffw, 7680, rg)
        k.v_lshl_add_u32(voffw, chunk, 4, voffw)
        k.s_lshl_b32(s(67), cbk, 5)
        k.v_add_u32(voffw, s(67), voffw)
        k.v_lshlrev_b32(voffc, 1, rg)
        k.waitcnt(lgkm=0)
        srd(k, SWM, s(62, 2), 640 * 7680)
        k.s_cmp_lt_u32(s(3), 30)
        k.s_cselect_b32(SWM[2], SWM[2], 0)
        srd(k, SC_, s(60, 2), 1280)
        for i in range(NR):
            k.s_mov_b32(s(67), hex(i * 192 * 7680))
            k.buffer_load_dwordx4(MW[i], voffw, SWM, s(67), mods="offen")
        for i in range(NR):
            k.buffer_load_ushort(MC[i], voffc, SC_, 0, mods=f"offen offset:{i * 384}")
        k.pop()
        k.label(p0j)
        k.s_mov_b32(SM[0], s(58))
        k.s_mov_b32(SM[1], s(59))
        k.s_mov_b32(SM[3], "0x20000")
        k.s_cmp_lt_u32(s(2), 240)
        k.s_cselect_b32(SM[2], hex(SZ_MOD + 2560), 0)

        k.s_mov_b32(WS[0], s(58))
        k.s_mov_b32(WS[1], s(59))
        k.s_mov_b32(DBGP[0], s(56))
        k.s_mov_b32(DBGP[1], s(57))
        k.s_mov_b32(SDBG[2], 256)
        k.s_mov_b32(SDBG[3], "0x20000")
        k.s_mov_b32(EPOCH, 0)
        noep = k.newlabel()
        k.s_or_b32(s(3), s(2), sW)
        k.s_cmp_lg_u32(s(3), 0)
        k.s_cbranch_scc1(noep)
        k.push(If(lambda sc: sc["w0"]))
        k.s_memrealtime(s(100, 2))
        k.v_mov_b32(tmpb, 0)
        k.waitcnt(lgkm=0)
        k.s_or_b32(s(3), s(100), 1)
        k.v_mov_b32(tmpa, s(3))
        k.s_mov_b64("exec", 1)
        k.buffer_store_dword(tmpa, tmpb, SDBG, 0, mods="offen sc1")
        k.s_mov_b64("exec", -1)
        k.pop()
        k.label(noep)
        k.s_and_b32(sT[0], s(2), 7)
        k.s_lshr_b32(sT[1], s(2), 3)
        k.s_and_b32(sT[2], sT[1], 3)
        k.s_lshl_b32(sHead, sT[0], 2)
        k.s_add_u32(sHead, sHead, sT[2])
        k.s_lshr_b32(sRb, sT[1], 2)
        k.v_and_b32(l15, 15, lane)
        k.v_lshrrev_b32(l4, 4, lane)
        k.v_lshlrev_b32(vl16, 4, lane)
        k.s_lshl_b32(sWb, sW, 11)
        k.s_lshl_b32(sT[0], sRb, 3)
        k.s_add_u32(sT[0], sT[0], sW)
        k.s_mul_i32(sXb, sT[0], 2 * 20 * 1024)
        k.s_lshl_b32(sT[1], sW, 3)
        k.v_add_u32(tmpb, sT[1], l4)
        for par in range(2):
            k.v_add_u32(tmpa, 4 * par, l4)
            k.v_lshlrev_b32(tmpa, 1, tmpa)
            k.v_xor_b32(tmpa, l15, tmpa)
            k.v_lshlrev_b32(tmpa, 4, tmpa)
            k.v_lshl_add_u32(voV[par], tmpb, 8, tmpa)
        for i in range(2):
            k.v_add_u32(tmpa, 4 * i, tmpb)
            k.v_and_b32(tmpa, 15, tmpa)
            k.v_xor_b32(tmpa, l15, tmpa)
            k.v_lshlrev_b32(tmpa, 4, tmpa)
            k.v_lshl_add_u32(voK[i], tmpb, 8, tmpa)
        k.s_and_b32(sT[1], sW, 1)
        k.s_lshl_b32(sT[1], sT[1], 2)
        k.v_add_u32(tmpa, sT[1], l4)
        k.v_lshlrev_b32(tmpa, 1, tmpa)
        k.v_xor_b32(tmpa, l15, tmpa)
        k.v_lshlrev_b32(tmpa, 4, tmpa)
        k.v_lshl_add_u32(voW[0], tmpb, 13, tmpa)
        srd(k, SXH, WS, SZ_H1, WS_H1)
        srd(k, SPT, WS, SZ_MOD, WS_MOD)
        srd(k, SWQ, s(8, 2), 640 * 8192)
        k.s_lshl_b32(sWo, sHead, 8)
        srd(k, SK, s(4, 2), 32 * 2048 * 256)
        srd(k, SV, s(6, 2), 32 * 2048 * 256)
        srd(k, SO, WS, SZ_O, WS_O)
        k.s_lshl_b32(sKV, sHead, 19)
        k.s_add_u32(sKV, sKV, hex(1536 * 256))
        k.s_mov_b32(sC, f32hex(LOG2E / 128 ** 0.5))
        k.s_mov_b32(sTh, f32hex(THRESH))
        ATV0 = voW[1]
        k.v_bfe_u32(tmpa, lane, 2, 2)
        k.v_lshl_add_u32(x0, l4, 2, tmpa)
        k.v_and_b32(x1, 7, x0)
        k.v_lshlrev_b32(x1, 5, x1)
        k.v_lshl_add_u32(x1, x0, 8, x1)
        k.v_and_b32(tmpb, 3, lane)
        k.v_lshl_add_u32(ATV0, tmpb, 3, x1)
        k.v_add_u32(ATV0, 4 * SLOT, ATV0)
        k.v_lshl_add_u32(x0, l4, 3, tmpa)
        k.v_and_b32(x1, 1, l4)
        k.v_lshl_add_u32(x1, x1, 2, tmpa)
        k.v_lshlrev_b32(x1, 5, x1)
        k.v_lshl_add_u32(x1, x0, 8, x1)
        k.v_lshl_add_u32(AT[0], tmpb, 3, x1)
        for tt in range(1, 8):
            k.v_xor_b32(AT[tt], tt << 5, AT[0])
        k.v_lshrrev_b32(tmpa, 1, l4)
        k.v_xor_b32(tmpa, l15, tmpa)
        k.v_lshlrev_b32(tmpa, 4, tmpa)
        k.v_lshl_add_u32(tmpa, l15, 8, tmpa)
        k.v_and_b32(tmpb, 1, l4)
        k.v_lshl_add_u32(AK[0], tmpb, 3, tmpa)
        for x in range(1, 8):
            k.v_xor_b32(AK[x], x << 5, AK[0])
        k.v_lshlrev_b32(aPT, 5, l4)
        k.v_add_u32(aPT, hex(PT_LDS), aPT)
        k.s_lshl_b32(sT[0], sRb, 2)
        k.s_lshr_b32(sT[1], sW, 1)
        k.s_add_u32(sT[0], sT[0], sT[1])
        k.s_lshl_b32(sOo, sT[0], 19)
        k.s_and_b32(sT[1], sW, 1)
        k.s_lshl_b32(sT[1], sT[1], 11)
        k.s_add_u32(sOo, sOo, sT[1])
        k.s_lshl_b32(sT[1], sHead, 14)
        k.s_add_u32(sOo, sOo, sT[1])

        modc, p0e = k.newlabel(), k.newlabel()
        k.s_cmp_ge_u32(sW, 2)
        k.s_cbranch_scc1(modc)
        k.push(If(lambda sc: sc["role"] == "ln"))
        for i in range(5):
            for j in range(4):
                unpack_bf16(k, F[8 * i + 2 * j], F[8 * i + 2 * j + 1], X[i][j])
        SP = v(B + 6, 2)

        def reduce():
            k.v_add_f32(sm, sm, tm)
            dpp_add(k, [sm], "row_ror:4")
            dpp_add(k, [sm], "row_ror:8")
            swap_add(k, [sm], [tm], 16)
            swap_add(k, [sm], [tm], 32)
        k.v_pk_add_f32(SP, F[0:2], F[2:4])
        for j in range(4, 40, 2):
            k.v_pk_add_f32(SP, SP, F[j:j + 2])
        reduce()
        k.v_mul_f32(sm, f32hex(-1.0 / 640), sm)
        k.v_mov_b32(tm, sm)
        for j in range(0, 40, 2):
            k.v_pk_add_f32(F[j:j + 2], F[j:j + 2], SP)
        k.v_pk_mul_f32(SP, F[0:2], F[0:2])
        for j in range(2, 40, 2):
            k.v_pk_fma_f32(SP, F[j:j + 2], F[j:j + 2], SP)
        reduce()
        k.v_mov_b32(tm, f32hex(1e-5))
        k.v_fmac_f32(tm, f32hex(1.0 / 640), sm)
        k.v_rsq_f32(tm, tm)
        k.v_mov_b32(sm, tm)
        for i in range(5):
            for j in range(0, 8, 2):
                k.v_pk_mul_f32(F[8 * i + j:8 * i + j + 2], F[8 * i + j:8 * i + j + 2], SP)
            for j in range(4):
                k.v_cvt_pk_f16_f32(X[i][j], F[8 * i + 2 * j], F[8 * i + 2 * j + 1])
            k.s_movk_i32(s(3), i * 4096)
            k.buffer_store_dwordx4(X[i], a0, SH, s(3), mods="offen sc1", tag="P0")
        k.s_branch(p0e)
        k.pop()
        k.label(modc)
        k.push(If(lambda sc: sc["role"] != "ln"))
        k.s_mov_b32(s(67), f32hex(-LOG2E))
        for i in range(NR):
            k.v_lshlrev_b32(MC[i], 16, MC[i])
        for i in range(NR):
            k.v_mul_f32(ME[i], s(67), MC[i])
        for i in range(NR):
            k.v_exp_f32(ME[i], ME[i])
        for i in range(NR):
            k.v_add_f32(ME[i], 1.0, ME[i])
        for i in range(NR):
            k.v_rcp_f32(ME[i], ME[i])
        for i in range(NR):
            k.v_mul_f32(MC[i], MC[i], ME[i])
        for i in range(NR):
            k.v_cvt_pk_bf16_f32(MC[i], MC[i], MC[i])
        for i in range(NR):
            k.v_lshlrev_b32(MC[i], 16, MC[i])
        for i in range(NR):
            for j in range(4):
                unpack_bf16(k, mtmp[2 * j], mtmp[2 * j + 1], MW[i][j])
            for j in range(8):
                if i == 0:
                    k.v_mul_f32(macc[j], MC[i], mtmp[j])
                else:
                    k.v_fmac_f32(macc[j], MC[i], mtmp[j])
        dpp_add(k, macc, "quad_perm:[2,3,0,1]")
        dpp_add(k, macc, "row_ror:4")
        dpp_add(k, macc, "row_ror:8")
        swap_add(k, macc, mtmp, 16)
        swap_add(k, macc, mtmp, 32)
        k.s_sub_u32(s(3), sW, 2)
        k.s_lshl_b32(s(3), s(3), 6)
        k.s_add_u32(s(3), s(3), hex(P0_LDS + 512))
        k.v_lshlrev_b32(a1, 5, chunk)
        k.v_add_u32(a1, s(3), a1)
        k.ds_write_b128(a1, v(B + 52, 4))
        k.ds_write_b128(a1, v(B + 56, 4), mods="offset:16")
        k.waitcnt(lgkm=0)
        k.pop()
        k.label(p0e)

        wslot = lambda c_: (c_ if c_ < 9 else 0) * SLOT
        kslot = lambda i: ((i + 1) % 4) * SLOT
        vslot = lambda i: (4 + i % 4) * SLOT

        def dma1(srd_, vo_, sbase, add, slot_addr, tag, j):
            k.s_add_u32(sT[3], sbase, hex(add))
            k.s_add_u32("m0", sWb, hex(slot_addr))
            k.buffer_load_dwordx4(vo_, srd_, sT[3], mods=f"offen offset:{1024 * j} lds" if j else "offen lds", tag=tag)

        def dmaW(c_, j):
            dma1(SWQ, voW[0], sWo, c_ * 64 * 8192 + j * (32768 - 1024), wslot(c_), f"W{c_}", j)

        def dmaK(i, j):
            dma1(SK, voK[j], sKV, i * 64 * 256, kslot(i), f"K{i}", j)

        def dmaV(i, j):
            dma1(SV, voV[j & 1], sKV, i * 64 * 256, vslot(i), f"V{i}", j)

        def loadX(ks, qt):
            k.s_add_u32(sXo, sXb, hex((qt * 20 + ks) * 1024))
            k.buffer_load_dwordx4(XF[ks % XD][4 * qt:4 * qt + 4], vl16, SXH, sXo, mods="offen sc1")

        vEp = v(33)
        k.v_mov_b32(x0, 0)
        k.buffer_load_dword(vEp, x0, SDBG, 0, mods="offen sc1", tag="P0")

        def wdma(shift=0):
            vw = voW[0]
            if shift:
                vw = x1
                k.v_subrev_u32(vw, hex(shift * 8 * 8192), voW[0])
            for c_ in range(LEAD):
                for j in range(ND):
                    k.s_add_u32(sT[3], sWo, hex(c_ * 64 * 8192 + j * (32768 - 1024)))
                    k.s_add_u32("m0", sWb, hex((wslot(c_) - shift * 2048) & 0xffffffff))
                    k.buffer_load_dwordx4(vw, SWQ, sT[3], mods=f"offen offset:{1024 * j} lds" if j else "offen lds",
                                          tag=f"W{c_}")
        k.s_barrier()
        w5, wj, wl = k.newlabel(), k.newlabel(), k.newlabel()
        k.s_cmp_eq_u32(sW, 2)
        k.s_cbranch_scc1(w5)
        k.push(If(lambda sc: not sc["w5"]))
        k.s_cmp_eq_u32(sW, 0)
        k.s_cbranch_scc1(wl)
        k.push(If(lambda sc: sc["w"] != 0))
        wdma()
        k.s_cmp_eq_u32(sW, 1)
        k.s_cbranch_scc1(wl)
        k.push(If(lambda sc: sc["w"] != 1))
        k.s_and_b32(s(3), sW, 5)
        k.s_cmp_lg_u32(s(3), 4)
        k.s_cbranch_scc1(wj)
        k.push(If(lambda sc: sc["w"] == 4))
        wdma(4)
        k.pop()
        k.s_branch(wj)
        k.pop()
        k.pop()
        k.label(wl)
        k.push(If(lambda sc: sc["role"] == "ln"))
        if self.opt("st", 0):
            k.s_memrealtime(s(70, 2))
        k.need("P0")
        if self.opt("st", 0):
            k.s_memrealtime(s(74, 2))
        self.get_epoch(tmpa, vEp)
        k.s_lshr_b32(sT[4], s(2), 5)
        k.s_and_b32(sT[6], s(2), 31)
        k.s_lshl_b32(sT[6], sT[6], 1)
        k.s_add_u32(sT[6], sT[6], sW)
        self.flag_off(sT[5], F_X, sT[4], sT[6])
        self.set_flag(sT[5], tmpa, tmpb)
        k.pop()
        k.s_branch(wj)
        k.pop()
        k.label(w5)
        k.push(If(lambda sc: sc["w5"]))
        col = a0
        k.v_and_b32(col, 15, lane)
        k.v_lshlrev_b32(col, 2, col)
        k.v_add_u32(a1, hex(P0_LDS + 512), col)
        for w in range(6):
            k.ds_read_b32(mtmp[w], a1, mods=f"offset:{w * 64}")
        k.v_add_f32(mtmp[0], mtmp[0], mtmp[1])
        k.v_add_f32(mtmp[2], mtmp[2], mtmp[3])
        k.v_add_f32(mtmp[4], mtmp[4], mtmp[5])
        k.v_add_f32(mtmp[0], mtmp[0], mtmp[2])
        k.v_add_f32(mtmp[0], mtmp[0], mtmp[4])
        k.v_cvt_pk_bf16_f32(mtmp[0], mtmp[0], mtmp[0])
        k.v_lshlrev_b32(mtmp[0], 16, mtmp[0])
        k.v_add_f32(mtmp[1], 1.0, mtmp[0])
        k.v_cvt_pk_bf16_f32(mtmp[1], mtmp[1], mtmp[1])
        k.v_lshlrev_b32(mtmp[1], 16, mtmp[1])
        k.s_sub_u32(s(3), cbk, 40)
        k.s_cmp_lt_u32(s(3), 40)
        k.s_cselect_b32(s(67), 1, 0)
        k.s_sub_u32(s(3), cbk, 160)
        k.s_cmp_lt_u32(s(3), 40)
        k.s_cselect_b32(s(67), 1, s(67))
        k.s_cmp_lg_u32(s(67), 0)
        k.s_cselect_b64("vcc", -1, 0)
        k.v_cndmask_b32(mtmp[0], mtmp[0], mtmp[1], "vcc")
        k.s_lshl_b32(s(3), cbk, 6)
        k.s_mov_b64("exec", "0xffff")
        k.buffer_store_dword(mtmp[0], col, SM, s(3), mods="offen sc1", tag="P0")
        k.s_mov_b64("exec", -1)
        self.get_epoch(tmpa, vEp)
        k.need("P0")
        k.s_mov_b32(sT[4], 0)
        self.flag_off(sT[5], F_M, sT[4], cbk)
        k.s_cmp_lt_u32(s(2), 240)
        k.s_cselect_b32(sT[5], sT[5], "0x7fff0000")
        self.set_flag(sT[5], tmpa, tmpb)
        k.pop()
        k.label(wj)

        def setup0():
            k.v_lshlrev_b32(x0, FSH, lane)
            k.s_lshl_b32(sT[5], sRb, 6 + FSH)
            k.v_add_u32(l15, sT[5], x0)
            k.v_add_u32(x0, hex(F_M * FPH), x0)
            k.v_and_b32(x1, 15, lane)
            k.v_lshlrev_b32(x1, FSH, x1)
            k.v_add_u32(x1, hex(F_M * FPH + (64 << FSH)), x1)
        self.wait(setup0, [x0, x1, l15], [tmpa, tmpb, l4])
        for sr in (82, 70, 74):
            self.stamp(sr)
        self.stamp()
        PTR = v(200, 16)
        nopt = k.newlabel()
        k.s_cmp_ge_u32(sW, 2)
        k.s_cbranch_scc1(nopt)
        k.push(If(lambda sc: sc["role"] == "ln"))
        k.v_min_u32(tmpa, 79, t)
        k.v_lshlrev_b32(tmpa, 5, tmpa)
        for q, off in enumerate((2560, 2576, 0, 16)):
            k.buffer_load_dwordx4(PTR[4 * q:4 * q + 4], tmpa, SPT, 0, mods=f"offen offset:{off} sc1")
        k.pop()
        k.label(nopt)
        for ks in range(2 * LEAD):
            for qt in range(NQ):
                loadX(ks, qt)
        nopt = k.newlabel()
        k.s_cmp_ge_u32(sW, 2)
        k.s_cbranch_scc1(nopt)
        k.push(If(lambda sc: sc["role"] == "ln"))
        for q in range(8):
            k.v_cvt_pk_f16_f32(PTR[q], PTR[2 * q], PTR[2 * q + 1])
        k.v_add_u32(tmpa, hex(PT_LDS), tmpa)
        k.ds_write_b128(tmpa, PTR[0:4])
        k.ds_write_b128(tmpa, PTR[4:8], mods="offset:16")
        k.waitcnt(lgkm=0)
        k.pop()
        k.label(nopt)

        def sync(tags):
            def f():
                k.need(*tags)
                k.s_barrier()
            return f

        S = Sched()
        atreg = [0]

        def at_shift(newreg):
            def f():
                d = (newreg - atreg[0]) * 4 * SLOT
                atreg[0] = newreg
                for tt in range(8):
                    if d > 0:
                        k.v_add_u32(AT[tt], hex(d), AT[tt])
                    else:
                        k.v_subrev_u32(AT[tt], hex(-d), AT[tt])
            return f

        def wread(G):
            ks, tt = divmod(G, 8)
            c_, sidx = divmod(ks, 2)
            reg, off = divmod(wslot(c_), 4 * SLOT)
            dst = WF[G % NWF]

            def f():
                assert atreg[0] == reg
                for rd in range(2):
                    k.ds_read_b64_tr_b16(dst[2 * rd:2 * rd + 2], AT[tt], mods=f"offset:{off + sidx * 8192 + rd * 1024}")
            return f

        def pread(ks):
            def f():
                k.ds_read_b128(PR[ks % 2][0:4], aPT, mods=f"offset:{ks * 128}")
                k.ds_read_b128(PR[ks % 2][4:8], aPT, mods=f"offset:{ks * 128 + 16}")
            return f

        def modulate(ks):
            fs = []
            P_ = PR[ks % 2]
            for qt in range(NQ):
                X_, H_ = XF[ks % XD][4 * qt:4 * qt + 4], HB[ks % 2][4 * qt:4 * qt + 4]
                for j in range(4):
                    for hf in range(2):
                        fs.append(lambda j=j, hf=hf, X_=X_: k.v_fma_mix_f32(
                            HT[2 * j + hf], X_[j], P_[j], P_[4 + j], mods=f"op_sel:[{hf},{hf},{hf}] op_sel_hi:[1,1,1]"))
                for j in range(4):
                    fs.append(lambda j=j, H_=H_: k.v_cvt_pk_bf16_f32(H_[j], HT[2 * j], HT[2 * j + 1]))
            return fs

        for G in range(160):
            ks, tt = divmod(G, 8)
            for qt in range(NQ):
                S.add_mfma(lambda G=G, ks=ks, tt=tt, qt=qt: k.op(
                    MF, acc(tt, qt), WF[G % NWF], HB[ks % 2][4 * qt:4 * qt + 4], 0 if ks == 0 else acc(tt, qt)))
            S.at(max(NQ * G - LA, NQ * (G - NWF) + NQ - 1), wread(G), 1)
        for c_, reg in ((4, 1), (8, 2), (9, 0)):
            S.at(CH * c_ - LA, at_shift(reg), 0.5)
        S.at(-1, sync(["W0"]), 0)
        S.at(-1, pread(0), 0.6)
        for f in modulate(0):
            S.at(-1, f, 2)
        S.at(-1, pread(1), 3)
        for ks in range(1, 20):
            S.spread(modulate(ks), KS * (ks - 1) + 2, KS * ks - 1)
            if ks + 1 < 20:
                S.at(KS * (ks - 1) + KS // 2, pread(ks + 1), 3)
        for c_ in range(1, 10):
            if c_ % 2 == 1 and c_ > 1:
                continue
            tags = [f"W{c_}"] + ([f"W{c_ + 1}"] if c_ > 1 else [])
            S.at(CH * c_ - LA, sync(tags), 0)
        for c_ in range(0, 10 - LEAD):
            cc = c_ + LEAD
            for j in range(ND):
                S.at(CH * c_ + 2 + 16 * j, lambda cc=cc, j=j: dmaW(cc, j), 3)
            for h in range(2):
                for qt in range(NQ):
                    S.at(CH * c_ + KS * h + 6 + 6 * qt, lambda ks=2 * cc + h, qt=qt: loadX(ks, qt), 3)
        kv = []
        for fn, i in ((dmaK, 0), (dmaK, 1), (dmaV, 0), (dmaK, 2), (dmaV, 1), (dmaV, 2)):
            kv += [lambda fn=fn, i=i, j=j: fn(i, j) for j in range(ND)]
        p0 = CH * (10 - LEAD)
        for i, f in enumerate(kv):
            S.at(max(p0 + 2 + 6 * i, (CH * 8 - LA + 1) if i >= 5 * ND else 0), f, 3)

        A0 = 160 * NQ
        kuse, vuse = {}, {}
        kcnt, vcnt = [0], [0]

        def add_Sg(step, kt, ds):
            idx = kcnt[0]
            kcnt[0] += 1
            dst = KF[idx % NKF]
            base = kslot(step // 2) + (step % 2) * 8192 + kt * 4096
            n0 = len(S.mf)
            for qt in range(NQ):
                D = SB[step % 2][(kt * NQ + qt) * 4:(kt * NQ + qt) * 4 + 4]
                C = D if ds else (0 if step < 2 else NM[4 * qt:4 * qt + 4])
                S.add_mfma(lambda D=D, C=C, qt=qt: k.op(MF, D, dst, QB[(ds * NQ + qt) * 4:(ds * NQ + qt) * 4 + 4], C))
            kuse[idx] = n0 + NQ - 1

            def rd():
                for hi in range(2):
                    k.ds_read_b64(dst[2 * hi:2 * hi + 2], AK[2 * ds + hi], mods=f"offset:{base}")
            S.at(max(n0 - LA, kuse.get(idx - NKF, -1)), rd, 1)

        def add_Pg(step, dt):
            idx = vcnt[0]
            vcnt[0] += 1
            dst = VF[idx % NVF]
            base = vslot(step // 2) - 4 * SLOT + (step % 2) * 8192
            n0 = len(S.mf)
            for qt in range(NQ):
                O_ = acc(dt, qt)
                S.add_mfma(lambda O_=O_, qt=qt: k.op(MF, O_, dst, PB[step % 2][4 * qt:4 * qt + 4], 0 if step == 0 else O_))
            vuse[idx] = n0 + NQ - 1

            def rd():
                assert atreg[0] == 1
                for r2 in range(2):
                    k.ds_read_b64_tr_b16(dst[2 * r2:2 * r2 + 2], AT[dt], mods=f"offset:{base + r2 * 4096}")
            S.at(max(n0 - LA, vuse.get(idx - NVF, -1)), rd, 1)

        def softmax(step):
            Sx, Px = SB[step % 2], PB[step % 2]
            A, B_, C = [], [], []
            n = 0
            for qt in range(NQ):
                for kt in range(2):
                    for h in range(2):
                        i0 = (kt * NQ + qt) * 4 + 2 * h
                        e0, e1 = TE[(2 * n) % 8], TE[(2 * n + 1) % 8]
                        n += 1
                        a_ = []
                        s0, s1 = Sx[i0], Sx[i0 + 1]
                        if step < 2:
                            a_ = [lambda e0=e0, s0=s0, qt=qt: k.v_add_f32(e0, s0, NM[4 * qt]),
                                  lambda e1=e1, s1=s1, qt=qt: k.v_add_f32(e1, s1, NM[4 * qt])]
                            s0, s1 = e0, e1
                        A.append(a_)
                        B_.append([lambda e0=e0, s0=s0: k.v_exp_f32(e0, s0), lambda e1=e1, s1=s1: k.v_exp_f32(e1, s1)])
                        c_ = []
                        if kt == 0 and h == 0:
                            c_.append(lambda e0=e0, e1=e1, qt=qt: k.v_add_f32(ts[qt], e0, e1))
                        else:
                            c_.append(lambda e0=e0, e1=e1: k.v_add_f32(tall, e0, e1))
                            c_.append(lambda qt=qt: k.v_add_f32(ts[qt], ts[qt], tall))
                        c_.append(lambda e0=e0, e1=e1, qt=qt, kt=kt, h=h: k.v_cvt_pk_bf16_f32(Px[4 * qt + 2 * kt + h], e0, e1))
                        C.append(c_)
            fs = []
            NP = 4 * NQ
            for stp in range(NP + 2):
                if stp < NP:
                    fs += A[stp]
                if 1 <= stp < NP + 1:
                    fs += B_[stp - 1]
                if stp >= 2:
                    fs += C[stp - 2]
            return fs

        def rowmax(step, dst, tmp):
            Sx = SB[step % 2]
            fs = []
            for qt in range(NQ):
                v8 = [Sx[(kt * NQ + qt) * 4 + e] for kt in range(2) for e in range(4)]
                fs.append(lambda qt=qt, v8=v8: k.v_max3_f32(dst[qt], v8[0], v8[1], v8[2]))
                fs.append(lambda qt=qt, v8=v8: k.v_max3_f32(tmp[qt], v8[3], v8[4], v8[5]))
                fs.append(lambda qt=qt, v8=v8: k.v_max3_f32(dst[qt], dst[qt], v8[6], v8[7]))
                fs.append(lambda qt=qt: k.v_max_f32(dst[qt], dst[qt], tmp[qt]))
            for op in ("v_permlane16_swap_b32", "v_permlane32_swap_b32"):
                for qt in range(NQ):
                    fs.append(lambda qt=qt: k.v_mov_b32(tmp[qt], dst[qt]))
                for qt in range(NQ):
                    fs.append(lambda qt=qt, op=op: k.op(op, dst[qt], tmp[qt]))
                for qt in range(NQ):
                    fs.append(lambda qt=qt: k.v_max_f32(dst[qt], dst[qt], tmp[qt]))
            return fs

        def check(step):
            cold = f"L_attn_cold{step}"
            back = f"L_attn_back{step}"

            def f():
                k.v_add_f32(tall, ts[0], ts[1])
                k.v_cmp_nge_f32("vcc", sTh, tall)
                k.s_cbranch_vccnz(cold)
                k.label(back)
                for qt in range(NQ):
                    k.v_add_f32(lsum[qt], lsum[qt], ts[qt])
                k.cold()
                k.label(cold)
                k.nop(16)
                tm_ = TE[0:4]
                dl = [PB[step % 2][i] for i in range(4)]
                for g in rowmax(step, dl, tm_):
                    g()
                for qt in range(NQ):
                    if step < 2:
                        k.v_add_f32(dl[qt], dl[qt], NM[4 * qt])
                    k.v_max_f32(ts[qt], 0, dl[qt])
                for qt in range(NQ):
                    k.v_sub_f32(tm_[qt], 0, ts[qt])
                    k.v_exp_f32(tm_[qt], tm_[qt])
                for qt in range(NQ):
                    for e in range(4):
                        k.v_sub_f32(NM[4 * qt + e], NM[4 * qt + e], ts[qt])
                    k.v_mul_f32(lsum[qt], lsum[qt], tm_[qt])
                    for dt in range(8):
                        for e in range(4):
                            r_ = acc(dt, qt)[e]
                            k.v_mul_f32(r_, r_, tm_[qt])
                    for st2 in ([step + 1] if 2 <= step + 1 < 16 else []) + ([step] if step >= 2 else []):
                        Sn = SB[st2 % 2]
                        for kt in range(2):
                            for e in range(4):
                                i0 = (kt * NQ + qt) * 4 + e
                                k.v_sub_f32(Sn[i0], Sn[i0], ts[qt])
                for g in softmax(step):
                    g()
                k.nop(4)
                k.s_branch(back)
                k.pop()
            return f

        S.at(A0 - LA, sync(["K0"]), 0)
        for j in range(ND):
            S.at(A0 - LA + 2 + 6 * j, lambda j=j: dmaV(3, j), 3)

        def qcvt(ds, qt):
            fs = []
            for u in range(2):
                src = acc(2 * ds + u, qt)
                for e in range(4):
                    fs.append(lambda e=e, u=u, src=src: k.v_mul_f32(TE[4 * u + e], sC, src[e]))
                for h in range(2):
                    fs.append(lambda h=h, u=u: k.v_cvt_pk_bf16_f32(QB[(ds * NQ + qt) * 4 + 2 * u + h],
                                                                   TE[4 * u + 2 * h], TE[4 * u + 2 * h + 1]))
            return fs
        for ds in range(4):
            fs = []
            for qt in range(NQ):
                fs += qcvt(ds, qt)
            lo = A0 - KS + 2 * NQ * (ds + 1) + 2
            S.spread(fs, min(lo, A0 - 1), min(lo + 2 * NQ, A0))

        def at_v():
            atreg[0] = 1
            for tt in range(8):
                k.v_xor_b32(AT[tt], tt << 5, ATV0)
        S.at(A0 - LA + 1, at_v, 3)
        for kt in range(2):
            for ds in range(4):
                add_Sg(0, kt, ds)
        n0 = len(S.mf)
        for kt in range(2):
            for ds in range(4):
                add_Sg(1, kt, ds)
        mx = [PB[1][i] for i in range(4)]
        fs = rowmax(0, mx, TE[0:4])
        for qt in range(NQ):
            for e in range(4):
                fs.append(lambda qt=qt, e=e: k.v_sub_f32(NM[4 * qt + e], 0, mx[qt]))
        fs += softmax(0)
        for qt in range(NQ):
            fs.append(lambda qt=qt: k.v_mov_b32(lsum[qt], ts[qt]))
        S.spread(fs, n0 + 2, n0 + 8 * NQ)

        tstart = {}
        for step in range(1, 16):
            n0 = len(S.mf)
            tstart[step] = n0
            if step + 1 < 16:
                sg = [(kt, ds) for kt in range(2) for ds in range(4)]
                add_Sg(step + 1, *sg[0])
                for i in range(8):
                    if i + 1 < 8:
                        add_Sg(step + 1, *sg[i + 1])
                    add_Pg(step - 1, i)
            else:
                for i in range(8):
                    add_Pg(step - 1, i)
            n1 = len(S.mf)
            S.spread(softmax(step), n0 + 2, n1)
            S.at(n1 - 1, check(step), 3)
            if step % 2 == 1:
                i = (step - 1) // 2
                tags = [f"K{i + 1}", f"V{i}"] if i + 1 < 8 else [f"V{i}"]
                iss = []
                if i + 3 < 8:
                    iss += [lambda i=i, j=j: dmaK(i + 3, j) for j in range(ND)]
                if 2 <= i and i + 2 < 8:
                    iss += [lambda i=i, j=j: dmaV(i + 2, j) for j in range(ND)]
                S.at(n0 - LA, sync(tags), 0)
                for q, f in enumerate(iss):
                    S.at(n0 - LA + 4 + 12 * q, f, 3)
        S.spread(SJ.wt_setup(lane), tstart[1], tstart[2], 4)
        for i in range(4):
            S.at(tstart[2] + 3 + 8 * i, SJ.wt_dma(i), 4)
            S.at(tstart[4] + 2 + 4 * i, SJ.wt_read(i, first=(i == 0)), 4)
            S.at(tstart[5] + 1 + 6 * i, SJ.wt_store(i), 4)
        SFP = s(56, 4)
        mq = [v(248 + i) for i in range(3)]
        mo = [v(251 + i) for i in range(3)]

        def mchk_issue():
            srd(k, SFP, WS, FSZ, WS_FLG)
            for i in range(3):
                k.v_add_u32(mo[i], 64 * (i + 1), lane)
                k.v_min_u32(mo[i], 239, mo[i])
                k.v_lshlrev_b32(mo[i], FSH, mo[i])
                k.v_add_u32(mo[i], hex(F_M * FPH), mo[i])
            for i in range(3):
                k.buffer_load_dword(mq[i], mo[i], SFP, 0, mods="offen sc1")

        def mchk():
            again, ok = k.newlabel(), k.newlabel()
            k.v_readlane_b32(s(3), vEp, 0)
            k.v_xor_b32(mq[0], mq[0], mq[1])
            k.v_xor_b32(mq[2], s(3), mq[2])
            k.v_xor_b32(mq[1], s(3), mq[1])
            k.v_or3_b32(mq[0], mq[0], mq[1], mq[2])
            k.v_cmp_ne_u32("vcc", 0, mq[0])
            k.s_cbranch_vccnz(again)
            k.label(ok)
            k.v_readlane_b32(EPOCH, vEp, 0)
            k.cold()
            k.label(again)
            k.v_mov_b32(mq[0], 0)
            srd(k, SFP, DBGP, 256)
            self.poll([mq[0]], [vEp], SFP, lambda d_: k.v_cmp_eq_u32("vcc", 0, d_))
            k.v_readfirstlane_b32(EPOCH, vEp)
            srd(k, SFP, WS, FSZ, WS_FLG)
            self.poll(mo, mq, SFP, lambda d_: k.v_cmp_ne_u32("vcc", EPOCH, d_))
            k.s_branch(ok)
            k.pop()
        S.at(tstart[3] + 20, mchk_issue, 4)
        S.at(tstart[3] + 31, lambda: None, 4)
        S.at(tstart[5] + 20, mchk, 3.9)
        S.spread(SJ.u_setup(t), tstart[6] - 6, tstart[6] + 16, 4)
        for i in range(5):
            S.at(tstart[6] + 18 + 6 * i if i < 2 else tstart[6 + i] - 1, SJ.u_load(i), 4)
            S.spread(SJ.u_fma(i), tstart[8 + i] - 24, tstart[8 + i] - 4, 4)
        S.spread(SJ.u_reduce(), tstart[12], tstart[13] - LA - 1, 4)
        S.at(tstart[13] - LA - 1, lambda: k.waitcnt(lgkm=0), 5)
        S.spread(SJ.u_final(lane), tstart[13], tstart[13] + 20, 4)
        S.at(tstart[15] - LA - 1, lambda: k.need("SJ"), 5)

        def sig_side():
            skip = k.newlabel()
            k.s_cmp_lg_u32(sW, 0)
            k.s_cbranch_scc1(skip)
            k.push(If(lambda sc: sc["w0"]))
            k.s_mov_b32(sT[4], 0)
            self.flag_off(sT[5], F_S, sT[4], s(2))
            self.set_flag(sT[5], v(252), v(253))
            k.pop()
            k.label(skip)
        S.at(tstart[15] - LA + 1, sig_side, 4)

        nf = len(S.mf)
        for dt in range(8):
            add_Pg(15, dt)
        fin = []
        for op in ("v_permlane16_swap_b32", "v_permlane32_swap_b32"):
            for qt in range(NQ):
                fin.append(lambda qt=qt: k.v_mov_b32(ts[qt], lsum[qt]))
            for qt in range(NQ):
                fin.append(lambda qt=qt, op=op: k.op(op, lsum[qt], ts[qt]))
            for qt in range(NQ):
                fin.append(lambda qt=qt: k.v_add_f32(lsum[qt], lsum[qt], ts[qt]))
        for qt in range(NQ):
            fin.append(lambda qt=qt: k.v_rcp_f32(lsum[qt], lsum[qt]))
        S.spread(fin, nf, nf + 5)
        OUT = [v(84 + 4 * i, 4) for i in range(8)]

        def epi(ds):
            fs = []
            for qt in range(NQ):
                o = OUT[ds * NQ + qt]
                for u in range(2):
                    src = acc(2 * ds + u, qt)
                    for e in range(4):
                        fs.append(lambda e=e, u=u, qt=qt, src=src: k.v_mul_f32(TE[4 * u + e], src[e], lsum[qt]))
                    for h in range(2):
                        fs.append(lambda h=h, u=u, o=o: k.v_cvt_pk_bf16_f32(o[2 * u + h], TE[4 * u + 2 * h],
                                                                            TE[4 * u + 2 * h + 1]))

                def st(o=o, qt=qt):
                    if qt == 0:
                        k.s_add_u32(sT[4], sOo, ds * 4096)
                    k.buffer_store_dwordx4(o, vl16, SO, sT[4], mods=f"offen offset:{qt * 1024} sc1", tag="OST")
                fs.append(st)
            return fs
        S.spread(epi(0), nf + 6, nf + 10)
        S.spread(epi(1), nf + 10, nf + 14)
        S.spread(epi(2), nf + 14, nf + 16)
        S.emit()
        for f in epi(3):
            f()
        self.stamp()
        self.flag_off(s(92), F_O, sRb, sHead)

    def skinny(self, op):
        k = self.k
        depth = 3
        NKS = 128 if op else 54
        cnts = [32] * 4 if op else [14, 14, 13, 13]
        NMAX, nmin = max(cnts), min(cnts)
        k.s_load_dwordx2(s(8, 2), s(0, 2), KA_X if op else KA_OUT)
        SA, SBf, SM, SX, SY, SST = s(12, 4), s(16, 4), s(20, 4), s(24, 4), s(32, 4), s(36, 4)
        sRb, sCb = s(41), s(42)
        sA, sB = s(43), s(44)
        sT = [s(46 + i) for i in range(8)]
        sE = [s(60 + i) for i in range(8)]
        lane, vo, tmp, m_, g_ = v(1), v(2), v(3), v(4), v(5)
        vlr, vrow, vx, vp = v(6), v(7), v(8), v(9)
        voB = [v(10 + j) for j in range(4)]
        vlw = [None, v(14), v(15), v(3)]
        ACC = v(16, 80)
        acc = lambda j, nt: ACC[(j * 5 + nt) * 4:(j * 5 + nt) * 4 + 4]
        FR = [v(96 + 36 * i, 36) for i in range(depth)]
        P1, P2, XR = v(204, 20), v(224, 20), v(244, 10)
        RB = [v(96 + 20 * i, 20) for i in range(3)]
        idle, endp = k.newlabel(), k.newlabel()
        act = lambda sc: sc["act"] != "idle"
        k.s_and_b32(sT[0], s(2), 7)
        k.s_lshr_b32(sT[1], s(2), 3)
        k.s_and_b32(sT[2], sT[1], 3)
        k.s_lshl_b32(sRb, sT[0], 2)
        k.s_add_u32(sRb, sRb, sT[2])
        k.s_lshr_b32(sCb, sT[1], 2)
        k.v_and_b32(lane, 63, v(0))
        k.v_lshlrev_b32(vo, 4, lane)
        if op:
            k.need("OST")
            self.signal(s(92), v(252), v(253))
        else:
            nosig = k.newlabel()
            k.s_cmp_eq_u32(s(92), -1)
            k.s_cbranch_scc1(nosig)
            k.push(If(lambda sc: sc["p3"]))
            k.need("AST")
            self.signal(s(92), v(252), v(253))
            k.pop()
            k.label(nosig)
        self.stamp()
        for j in range(4):
            k.s_add_u32(sT[3], sW, j)
            k.s_and_b32(sT[3], sT[3], 3)
            k.s_lshl_b32(sT[3], sT[3], 10)
            k.v_add_u32(voB[j], sT[3], vo)
        k.s_and_b32(sT[4], sW, 3)
        if op:
            k.s_lshl_b32(sT[3], sT[4], 5)
        else:
            k.s_mul_i32(sT[3], sT[4], 14)
            k.s_cmp_eq_u32(sT[4], 3)
            k.s_cselect_b32(sT[4], 1, 0)
            k.s_sub_u32(sT[3], sT[3], sT[4])
        k.s_mul_i32(sA, sCb, NKS)
        k.s_add_u32(sA, sA, sT[3])
        k.s_mul_i32(sA, sA, 5120)
        k.s_mul_i32(sB, sRb, NKS)
        k.s_add_u32(sB, sB, sT[3])
        k.s_lshl_b32(sB, sB, 12)
        srd(k, SM, WS, SZ_MOD, WS_MOD)
        srd(k, SBf, WS, SZ_O if op else SZ_A2, WS_O if op else WS_A2)
        srd(k, SA, WS, SZ_WOT if op else SZ_WDT, WS_WOT if op else WS_WDT)

        def loadsA(i):
            F = FR[i % depth]
            for nt in range(4):
                k.buffer_load_dwordx4(F[16 + 4 * nt:20 + 4 * nt], vo, SA, sA, mods=f"offen offset:{nt * 1024} sc1")
            k.s_add_u32(sT[5], sA, 4096)
            k.buffer_load_dwordx4(F[32:36], vo, SA, sT[5], mods="offen sc1")
            k.s_add_u32(sA, sA, 5120)

        def loadsB(i):
            F = FR[i % depth]
            for j in range(4):
                k.buffer_load_dwordx4(F[4 * j:4 * j + 4], voB[j], SBf, sB, mods="offen sc1")
            k.s_add_u32(sB, sB, 4096)

        if op:
            def setS():
                k.v_lshlrev_b32(v(248), FSH, lane)
                k.v_add_u32(v(248), hex(F_S * FPH), v(248))
                for i in range(1, 4):
                    k.v_add_u32(v(248 + i), hex((64 * i) << FSH), v(248))
            self.wait(setS, [v(248 + i) for i in range(4)], [v(252 + i) for i in range(4)], pw=4)
        pre = k.newlabel()
        k.s_cmp_ge_u32(sW, 4)
        k.s_cbranch_scc1(pre)
        k.push(If(act))
        for i in range(depth - 1):
            loadsA(i)
        k.pop()
        k.label(pre)

        def setD():
            k.s_lshr_b32(sT[4], sRb, 2)
            self.flag_off(sT[5], F_O if op else F_A, sT[4], 0)
            k.v_and_b32(v(252), 31, lane)
            if not op:
                k.v_min_u32(v(252), 26, v(252))
            k.v_lshlrev_b32(v(252), FSH, v(252))
            k.v_add_u32(v(252), sT[5], v(252))
        self.wait(setD, [v(252)], [v(254)], pw=4)
        self.stamp()
        k.s_cmp_ge_u32(sW, 4)
        k.s_cbranch_scc1(idle)
        k.push(If(act))
        for i in range(depth - 1):
            loadsB(i)
        k.waitcnt(lgkm=0)
        srd(k, SX, s(8, 2), SZ_H1)
        if op:
            srd(k, SY, WS, SZ_H1, WS_Y)
            srd(k, SST, WS, SZ_STATS, WS_STATS)
        k.v_and_b32(m_, 15, lane)
        k.v_lshrrev_b32(g_, 4, lane)
        k.s_mul_i32(sT[0], sCb, 320)
        k.v_lshlrev_b32(vp, 4, g_)
        k.s_add_u32(sE[6], sT[0], (2 if op else 5) * 2560)
        EL = []
        for nt in range(5):
            EL.append(lambda nt=nt: k.buffer_load_dwordx4(P1[4 * nt:4 * nt + 4], vp, SM, sE[6], mods=f"offen offset:{nt * 64} sc1"))
        k.s_lshl_b32(sT[2], sRb, 6)
        k.s_lshl_b32(sT[3], sW, 4)
        k.s_add_u32(sT[2], sT[2], sT[3])
        k.v_add_u32(vrow, sT[2], m_)
        k.v_mul_u32_u24(vx, 1280, vrow)
        k.v_lshl_add_u32(vx, g_, 3, vx)
        k.s_mul_i32(sE[0], sCb, 160)
        k.s_mul_i32(sE[1], sW, 5120)
        k.s_add_u32(sE[1], sE[1], hex(X1_LDS))
        vx1 = v(254)
        k.v_add_u32(vx1, sE[1], vo)
        if op:
            k.s_add_u32(sE[7], sT[0], 4 * 2560)
            for nt in range(5):
                EL.append(lambda nt=nt: k.buffer_load_dwordx4(P2[4 * nt:4 * nt + 4], vp, SM, sE[7], mods=f"offen offset:{nt * 64} sc1"))
            for nt in range(5):
                EL.append(lambda nt=nt: k.buffer_load_dwordx2(XR[2 * nt:2 * nt + 2], vx, SX, sE[0], mods=f"offen offset:{nt * 32}"))
            k.s_lshr_b32(sE[3], sT[2], 4)
            k.s_mul_i32(sE[3], sE[3], 20 * 1024)
            k.v_lshlrev_b32(vrow, 4, m_)
            k.s_lshr_b32(sE[5], sT[2], 4)
            k.s_lshl_b32(sE[5], sE[5], 10)
            k.s_lshr_b32(sT[1], sCb, 1)
            k.s_lshl_b32(sT[1], sT[1], 8)
            k.s_add_u32(sE[5], sE[5], sT[1])
            k.s_and_b32(sT[1], sCb, 1)
            k.s_lshl_b32(sT[1], sT[1], 3)
            k.s_add_u32(sE[5], sE[5], sT[1])
        else:
            for nt in range(5):
                EL.append(lambda nt=nt: k.ds_read_b128(P2[4 * nt:4 * nt + 4], vx1, mods=f"offset:{nt * 1024}"))
        k.s_mul_i32(sT[7], sW, 15360)
        k.v_add_u32(vlr, sT[7], vo)
        for j in range(1, 4):
            k.s_add_u32(sT[7], sW, j)
            k.s_and_b32(sT[7], sT[7], 3)
            k.s_mul_i32(sT[7], sT[7], 15360)
            k.v_add_u32(vlw[j], sT[7], vo)

        def wr(n):
            j, nt = 1 + n // 5, n % 5
            k.ds_write_b128(vlw[j], acc(j, nt), mods=f"offset:{(3 - j) * 5120 + nt * 1024}")

        def compute(i, last=False):
            F = FR[i % depth]
            order = [(nt, j) for nt in range(5) for j in range(4)]
            if last:
                order = [(nt, j) for j in (1, 2, 3, 0) for nt in range(5)]
            for n, (nt, j) in enumerate(order):
                c = acc(j, nt)
                k.op(MF, c, F[16 + 4 * nt:20 + 4 * nt], F[4 * j:4 * j + 4], 0 if i == 0 else c)
                if last and n >= 7:
                    wr(n - 7)
            if last:
                for n in range(13, 15):
                    wr(n)

        def step(i, **kw):
            if i + depth - 1 < NMAX:
                loadsB(i + depth - 1)
                loadsA(i + depth - 1)
                if i + depth - 1 == NMAX - 1:
                    for f in EL:
                        f()
            compute(i, **kw)

        if NMAX == nmin:
            for i in range(NMAX):
                step(i, last=(i == NMAX - 1))
        else:
            short, join = k.newlabel(), k.newlabel()
            for i in range(nmin - 1):
                step(i)
            k.s_cmp_ge_u32(sW, 2)
            k.s_cbranch_scc1(short)
            k.push(If(lambda sc: sc["act"] == "long"))
            compute(nmin - 1)
            compute(nmin, last=True)
            k.s_branch(join)
            k.pop()
            k.label(short)
            k.push(If(lambda sc: sc["act"] == "short"))
            compute(nmin - 1, last=True)
            k.pop()
            k.label(join)
        k.waitcnt(vm=0, lgkm=0)
        k.s_barrier()
        for d in range(3):
            for nt in range(5):
                k.ds_read_b128(RB[d][4 * nt:4 * nt + 4], vlr, mods=f"offset:{d * 5120 + nt * 1024}")
        OWN = ACC[0:20]
        XF = ACC[20:40]
        if op:
            for nt in range(5):
                for j in range(2):
                    unpack_bf16(k, XF[4 * nt + 2 * j], XF[4 * nt + 2 * j + 1], XR[2 * nt + j])
        for i in range(0, 20, 2):
            k.v_pk_add_f32(OWN[i:i + 2], OWN[i:i + 2], RB[0][i:i + 2])
        for i in range(0, 20, 2):
            k.v_pk_add_f32(RB[1][i:i + 2], RB[1][i:i + 2], RB[2][i:i + 2])
        for i in range(0, 20, 2):
            k.v_pk_add_f32(OWN[i:i + 2], OWN[i:i + 2], RB[1][i:i + 2])
        if op:
            for i in range(0, 20, 2):
                k.v_pk_fma_f32(OWN[i:i + 2], OWN[i:i + 2], P1[i:i + 2], XF[i:i + 2])
            Yv, YP = RB[1], RB[2]
            for nt in range(5):
                for e in range(0, 4, 2):
                    i = 4 * nt + e
                    k.v_pk_mul_f32(Yv[i:i + 2], OWN[i:i + 2], P2[i:i + 2])
                for j in range(2):
                    k.v_cvt_pk_bf16_f32(YP[2 * nt + j], Yv[4 * nt + 2 * j], Yv[4 * nt + 2 * j + 1])
            k.s_mul_i32(sT[0], sCb, 5)
            k.s_lshr_b32(sT[1], sT[0], 1)
            k.s_lshl_b32(sT[1], sT[1], 10)
            k.s_add_u32(sT[1], sT[1], sE[3])
            odd, join2 = k.newlabel(), k.newlabel()
            k.s_bitcmp1_b32(sCb, 0)
            k.s_cbranch_scc1(odd)
            k.push(If(lambda sc: not sc["odd"]))
            k.buffer_store_dwordx4(YP[0:4], vo, SY, sT[1], mods="offen sc1")
            k.buffer_store_dwordx4(YP[4:8], vo, SY, sT[1], mods="offen offset:1024 sc1")
            k.buffer_store_dwordx2(YP[8:10], vo, SY, sT[1], mods="offen offset:2048 sc1")
            k.s_branch(join2)
            k.pop()
            k.label(odd)
            k.push(If(lambda sc: sc["odd"]))
            k.buffer_store_dwordx2(YP[0:2], vo, SY, sT[1], mods="offen offset:8 sc1")
            k.buffer_store_dwordx4(YP[2:6], vo, SY, sT[1], mods="offen offset:1024 sc1")
            k.buffer_store_dwordx4(YP[6:10], vo, SY, sT[1], mods="offen offset:2048 sc1")
            k.pop()
            k.label(join2)
            sm, tm = v(12), v(13)
            SP = v(12, 2)
            k.v_pk_add_f32(SP, OWN[0:2], OWN[2:4])
            for i in range(4, 20, 2):
                k.v_pk_add_f32(SP, SP, OWN[i:i + 2])
            k.v_add_f32(sm, sm, tm)
            swap_add(k, [sm], [tm], 16)
            for nt in range(5):
                k.ds_write_b128(vx1, OWN[4 * nt:4 * nt + 4], mods=f"offset:{nt * 1024}")
            swap_add(k, [sm], [tm], 32)
            k.v_mul_f32(sm, f32hex(1.0 / 80), sm)
            D = RB[0]
            MP = v(14, 2)
            k.v_sub_f32(v(14), 0, sm)
            k.v_sub_f32(v(15), 0, sm)
            for i in range(0, 20, 2):
                k.v_pk_add_f32(D[i:i + 2], OWN[i:i + 2], MP)
            k.v_pk_mul_f32(MP, D[0:2], D[0:2])
            for i in range(2, 20, 2):
                k.v_pk_fma_f32(MP, D[i:i + 2], D[i:i + 2], MP)
            m2, t2 = v(13), v(14)
            k.v_add_f32(m2, v(14), v(15))
            swap_add(k, [m2], [t2], 16)
            swap_add(k, [m2], [t2], 32)
            k.s_mov_b64("exec", "0xffff")
            k.buffer_store_dwordx2(v(12, 2), vrow, SST, sE[5], mods="offen sc1")
            k.s_mov_b64("exec", -1)
            k.waitcnt(vm=0, lgkm=0)
            k.s_branch(endp)
        else:
            YP = RB[2]
            for nt in range(5):
                for e in range(0, 4, 2):
                    i = 4 * nt + e
                    k.v_pk_fma_f32(OWN[i:i + 2], OWN[i:i + 2], P1[i:i + 2], P2[i:i + 2])
                for j in range(2):
                    k.v_cvt_pk_bf16_f32(YP[2 * nt + j], OWN[4 * nt + 2 * j], OWN[4 * nt + 2 * j + 1])
                k.buffer_store_dwordx2(YP[2 * nt:2 * nt + 2], vx, SX, sE[0], mods=f"offen offset:{nt * 32}")
            if self.opt("st", 0):
                k.waitcnt(vm=0)
                self.stamp()
            k.s_endpgm()
        k.pop()
        k.label(idle)
        k.push(If(lambda sc: sc["act"] == "idle"))
        if op:
            k.s_barrier()
        else:
            k.s_endpgm()
        k.pop()
        if op:
            k.label(endp)
            k.s_lshr_b32(sT[4], sRb, 2)
            k.s_lshr_b32(sT[6], s(2), 3)
            self.flag_off(s(92), F_Y, sT[4], sT[6])
            self.signal(s(92), v(252), v(253))
            self.stamp()

    def p3(self):
        k = self.k
        LA = self.opt("k3_la", 12)
        LEAD = self.opt("k3_lead", 3)
        XD = 2 * LEAD + 2
        NQ = 2
        KS, CH = 8 * NQ, 16 * NQ
        SC = 2
        skip = k.newlabel()
        k.s_mov_b32(s(92), -1)
        k.s_lshr_b32(s(3), s(2), 3)
        k.s_cmp_ge_u32(s(3), 27)
        k.s_cbranch_scc1(skip)
        k.push(If(lambda sc: sc["p3"]))
        k.s_load_dwordx4(s(8, 4), s(0, 2), KA_WG)
        SG, SU, SY, SUV, SST, SA = s(12, 4), s(16, 4), s(20, 4), s(24, 4), s(28, 4), s(32, 4)
        sFb, sRb, sWb = s(37), s(38), s(39)
        sT = [s(40 + i) for i in range(8)]
        sWo, sXo, sNL, sXb, sAo = s(48), s(49), s(50), s(51), s(52)
        t = v(0)
        lane, tmpa, tmpb, l4 = v(1), v(2), v(3), v(4)
        voD, vl16, aU = v(5), v(6), v(7)
        rstd = [v(10 + i) for i in range(NQ)]
        nmr = [v(14 + i) for i in range(NQ)]
        AT = [v(18 + i) for i in range(4)]
        ACC = v(24, 64)
        acc = lambda tt, qt: ACC[(tt * NQ + qt) * 4:(tt * NQ + qt) * 4 + 4]
        UB = v(88, 64)
        NWF = 8
        WF = [v(152 + 4 * i, 4) for i in range(NWF)]
        XF = [v(184 + 8 * i, 8) for i in range(XD)]
        OUTB = [v(248 + 4 * i, 4) for i in range(2)]
        fr = [i for i in range(XD) if i not in [x % XD for x in range(16, 20)]]
        E = [XF[fr[0]][i] for i in range(8)] + [XF[fr[1]][i] for i in range(8)]
        E0 = [v(22), v(23)]
        k.v_and_b32(lane, 63, t)
        k.s_and_b32(sT[0], s(2), 7)
        k.s_mul_i32(sT[0], sT[0], 27)
        k.s_add_u32(sT[0], sT[0], s(3))
        k.s_lshr_b32(sFb, sT[0], 3)
        k.s_and_b32(sRb, sT[0], 7)
        k.v_lshrrev_b32(l4, 4, lane)
        k.v_lshlrev_b32(vl16, 4, lane)
        k.s_lshl_b32(sWb, sW, 10)
        k.s_lshl_b32(sT[0], sRb, 3)
        k.s_add_u32(sT[0], sT[0], sW)
        k.s_mul_i32(sXb, sT[0], 2 * 20 * 1024)
        k.v_lshrrev_b32(tmpa, 3, lane)
        k.v_lshlrev_b32(tmpb, 1, l4)
        k.v_and_b32(voD, 7, lane)
        k.v_xor_b32(voD, voD, tmpb)
        k.s_lshl_b32(sT[2], sW, 3)
        k.v_add_u32(tmpa, sT[2], tmpa)
        k.v_mul_u32_u24(tmpa, 3456, tmpa)
        k.v_lshl_add_u32(voD, voD, 4, tmpa)
        srd(k, SY, WS, SZ_H1, WS_Y)
        srd(k, SUV, WS, SZ_U, WS_U)
        srd(k, SST, WS, SZ_STATS, WS_STATS)
        srd(k, SA, WS, SZ_A2, WS_A2)
        k.s_lshl_b32(sWo, sFb, 7)
        k.s_lshl_b32(sT[5], sT[0], 11)
        k.waitcnt(lgkm=0)
        srd(k, SG, s(8, 2), 640 * 3456)
        srd(k, SU, s(10, 2), 640 * 3456)

        def dmaW(c, j):
            k.s_add_u32(sT[3], sWo, hex(c * 64 * 3456))
            k.s_add_u32("m0", sWb, hex((c % 8) * SLOT + j * 8192))
            k.buffer_load_dwordx4(voD, SU if j else SG, sT[3], mods="offen lds", tag=f"G{c}")

        def loadX(ks, qt):
            k.s_add_u32(sXo, sXb, hex((qt * 20 + ks) * 1024))
            k.buffer_load_dwordx4(XF[ks % XD][4 * qt:4 * qt + 4], vl16, SY, sXo, mods="offen sc1")

        UT = v(96, 4)
        k.s_lshl_b32(sT[4], sFb, 10)
        k.buffer_load_dwordx4(UT, vl16, SUV, sT[4], mods="offen sc1")
        nod, nod2 = k.newlabel(), k.newlabel()
        k.s_cmp_eq_u32(sW, 4)
        k.s_cbranch_scc1(nod)
        k.push(If(lambda sc: sc["w"] != 4))
        for c in range(LEAD):
            for j in range(2):
                dmaW(c, j)
        k.s_cmp_lg_u32(sW, 5)
        k.s_cbranch_scc1(nod2)
        k.push(If(lambda sc: sc["w"] == 5))
        k.v_subrev_u32(tmpa, 8 * 3456, voD)
        for c in range(LEAD):
            for j in range(2):
                k.s_add_u32(sT[3], sWo, hex(c * 64 * 3456))
                k.s_add_u32("m0", sWb, hex(((c % 8) * SLOT + j * 8192 - 1024) & 0xffffffff))
                k.buffer_load_dwordx4(tmpa, SU if j else SG, sT[3], mods="offen lds", tag=f"G{c}")
        k.pop()
        k.label(nod2)
        k.pop()
        k.label(nod)
        k.s_mov_b32(sNL, f32hex(-LOG2E))
        k.v_lshrrev_b32(tmpa, 2, lane)
        k.v_bfe_u32(tmpb, lane, 3, 2)
        k.v_lshlrev_b32(tmpb, 5, tmpb)
        k.v_lshl_add_u32(tmpb, tmpa, 7, tmpb)
        k.v_and_b32(tmpa, 3, lane)
        k.v_lshl_add_u32(AT[0], tmpa, 3, tmpb)
        for tt in range(1, 4):
            k.v_xor_b32(AT[tt], tt << 5, AT[0])
        k.v_lshlrev_b32(aU, 4, l4)
        k.v_add_u32(aU, hex(8 * SLOT), aU)
        k.s_lshr_b32(sT[1], sT[0], 1)
        k.s_mul_i32(sAo, sT[1], 54 * 4096)
        k.s_and_b32(sT[1], sT[0], 1)
        k.s_lshl_b32(sT[1], sT[1], 11)
        k.s_add_u32(sAo, sAo, sT[1])
        k.s_lshl_b32(sT[1], sFb, 13)
        k.s_add_u32(sAo, sAo, sT[1])
        k.v_add_u32(tmpa, hex(8 * SLOT), vl16)
        k.ds_write_b128(tmpa, UT)

        def setY():
            self.flag_off(sT[6], F_Y, sRb, 0)
            k.v_and_b32(v(252), 31, lane)
            k.v_lshlrev_b32(v(252), FSH, v(252))
            k.v_add_u32(v(252), sT[6], v(252))
        self.wait(setY, [v(252)], [v(254)], pw=4)
        self.stamp()
        for ks in range(2 * LEAD):
            for qt in range(NQ):
                loadX(ks, qt)
            if ks == 1:
                for qt in range(NQ):
                    k.buffer_load_dwordx4(UB[4 * qt:4 * qt + 4], vl16, SST, sT[5], mods=f"offen offset:{qt * 1024} sc1")
        k.waitcnt(lgkm=0)

        def sync(tags):
            def f():
                k.need(*tags)
                k.s_barrier()
            return f

        S = Sched()
        atreg = [0]

        def at_shift(newreg):
            def f():
                d = (newreg - atreg[0]) * 4 * SLOT
                atreg[0] = newreg
                for tt in range(4):
                    if d > 0:
                        k.v_add_u32(AT[tt], hex(d), AT[tt])
                    else:
                        k.v_subrev_u32(AT[tt], hex(-d), AT[tt])
            return f

        order = [(ks, tt) for ks in range(16) for tt in range(8)]
        for ft in range(4):
            order += [(ks, tt) for ks in range(16, 20) for tt in (ft, 4 + ft)]

        def wread(G):
            ks, tt = order[G]
            c, sidx = divmod(ks, 2)
            reg, off = divmod((c % 8) * SLOT, 4 * SLOT)
            dst = WF[G % NWF]

            def f():
                assert atreg[0] == reg
                for rd in range(2):
                    k.ds_read_b64_tr_b16(dst[2 * rd:2 * rd + 2], AT[tt & 3],
                                         mods=f"offset:{off + (tt >> 2) * 8192 + sidx * 4096 + rd * 2048}")
            return f

        for G in range(160):
            ks, tt = order[G]
            for qt in range(NQ):
                S.add_mfma(lambda G=G, ks=ks, tt=tt, qt=qt: k.op(
                    MF, acc(tt, qt), WF[G % NWF], XF[ks % XD][4 * qt:4 * qt + 4], 0 if ks == 0 else acc(tt, qt)))
            S.at(max(NQ * G - LA, NQ * (G - NWF) + NQ - 1), wread(G), 1)
        for c, reg in ((4, 1), (8, 0)):
            S.at(CH * c - LA, at_shift(reg), 0.5)
        S.at(-1, sync(["G0"]), 0)
        for c in range(1, 9):
            if c % 2 == 1 and c > 1:
                continue
            tags = [f"G{c}"] + ([f"G{c + 1}"] if c > 1 else [])
            S.at(CH * c - LA, sync(tags), 0)
        for c in range(0, 10 - LEAD):
            cc = c + LEAD
            for j in range(2):
                S.at(CH * c + 2 + 16 * j, lambda cc=cc, j=j: dmaW(cc, j), 3)
            for h in range(2):
                for qt in range(NQ):
                    S.at(CH * c + KS * h + 6 + 6 * qt, lambda ks=2 * cc + h, qt=qt: loadX(ks, qt), 3)
        fs = []
        mean = [UB[8 + qt] for qt in range(NQ)]
        tm = [UB[12 + qt] for qt in range(NQ)]

        def swp(x):
            for op in ("v_permlane16_swap_b32", "v_permlane32_swap_b32"):
                for qt in range(NQ):
                    fs.append(lambda qt=qt: k.v_mov_b32(tm[qt], x[qt]))
                for qt in range(NQ):
                    fs.append(lambda qt=qt, op=op: k.op(op, x[qt], tm[qt]))
                for qt in range(NQ):
                    fs.append(lambda qt=qt: k.v_add_f32(x[qt], x[qt], tm[qt]))
        for qt in range(NQ):
            fs.append(lambda qt=qt: k.v_add_f32(mean[qt], UB[4 * qt], UB[4 * qt + 2]))
        swp(mean)
        for qt in range(NQ):
            b_ = UB[4 * qt:4 * qt + 4]
            fs.append(lambda qt=qt: k.v_mul_f32(mean[qt], 0.125, mean[qt]))
            fs.append(lambda qt=qt, b_=b_: k.v_sub_f32(b_[0], b_[0], mean[qt]))
            fs.append(lambda qt=qt, b_=b_: k.v_sub_f32(b_[2], b_[2], mean[qt]))
            fs.append(lambda qt=qt, b_=b_: k.v_mul_f32(b_[0], b_[0], b_[0]))
            fs.append(lambda qt=qt, b_=b_: k.v_fmac_f32(b_[0], b_[2], b_[2]))
            fs.append(lambda qt=qt, b_=b_: k.v_add_f32(rstd[qt], b_[1], b_[3]))
            fs.append(lambda qt=qt, b_=b_: k.v_fmac_f32(rstd[qt], f32hex(80.0), b_[0]))
        swp(rstd)
        for qt in range(NQ):
            fs.append(lambda qt=qt: k.v_mov_b32(tm[qt], f32hex(1e-5)))
            fs.append(lambda qt=qt: k.v_fmac_f32(tm[qt], f32hex(1.0 / 640), rstd[qt]))
            fs.append(lambda qt=qt: k.v_rsq_f32(rstd[qt], tm[qt]))
            fs.append(lambda qt=qt: k.v_mul_f32(nmr[qt], mean[qt], rstd[qt]))
            fs.append(lambda qt=qt: k.v_sub_f32(nmr[qt], 0, nmr[qt]))
        S.spread(fs, CH * SC, CH * (SC + 2) - 4)
        for ft in range(4):
            for vec in range(4):
                S.at(CH * (SC + 2) + 2 + 2 * (4 * ft + vec), lambda ft=ft, vec=vec: k.ds_read_b128(
                    UB[16 * ft + 4 * vec:16 * ft + 4 * vec + 4], aU, mods=f"offset:{ft * 256 + vec * 64}"), 1)
        dn = E0[0]
        fs = [lambda: k.v_sub_f32(dn, nmr[0], nmr[1])]
        for ft in range(4):
            for m in range(2):
                for e in range(4):
                    u1, u2 = UB[16 * ft + 8 * m + e], UB[16 * ft + 8 * m + 4 + e]
                    fs.append(lambda u1=u1, u2=u2: k.v_fma_f32(u2, nmr[1], u1, u2))
                    fs.append(lambda u1=u1, u2=u2: k.v_fma_f32(u1, dn, u1, u2))
        S.spread(fs, CH * (SC + 3) + 4, CH * (SC + 5))

        def epi(fts):
            fs = []
            for qt in range(NQ):
                o = OUTB[qt]
                for ft in fts:
                    u = ft & 1
                    G_, U_ = acc(ft, qt), acc(4 + ft, qt)
                    t1 = lambda m, e, ft=ft, qt=qt: UB[16 * ft + 8 * m + 4 * qt + e]
                    Eg = [E[8 * qt + 4 * u + e] for e in range(4)]
                    for e in range(4):
                        fs.append(lambda e=e, G_=G_, qt=qt, t1=t1: k.v_fma_f32(G_[e], G_[e], rstd[qt], t1(0, e)))
                    for e in range(4):
                        fs.append(lambda e=e, Eg=Eg, G_=G_: k.v_mul_f32(Eg[e], sNL, G_[e]))
                    for e in range(4):
                        fs.append(lambda e=e, Eg=Eg: k.v_exp_f32(Eg[e], Eg[e]))
                    for e in range(4):
                        fs.append(lambda e=e, U_=U_, qt=qt, t1=t1: k.v_fma_f32(U_[e], U_[e], rstd[qt], t1(1, e)))
                    for e in range(4):
                        fs.append(lambda e=e, Eg=Eg: k.v_add_f32(Eg[e], 1.0, Eg[e]))
                    for e in range(4):
                        fs.append(lambda e=e, Eg=Eg: k.v_rcp_f32(Eg[e], Eg[e]))
                    for e in range(4):
                        fs.append(lambda e=e, G_=G_, U_=U_: k.v_mul_f32(G_[e], G_[e], U_[e]))
                    for e in range(4):
                        fs.append(lambda e=e, G_=G_, Eg=Eg: k.v_mul_f32(G_[e], G_[e], Eg[e]))
                    for h in range(2):
                        fs.append(lambda h=h, u=u, o=o, G_=G_: k.v_cvt_pk_bf16_f32(o[2 * u + h], G_[2 * h], G_[2 * h + 1]))
                    if u == 1:
                        def st(o=o, qt=qt, ft=ft):
                            k.s_add_u32(sT[4], sAo, (ft >> 1) * 4096)
                            k.buffer_store_dwordx4(o, vl16, SA, sT[4], mods=f"offen offset:{qt * 1024} sc1", tag="AST")
                        fs.append(st)
            return fs
        for ft in range(3):
            S.spread(epi([ft]), (128 + 8 * (ft + 1)) * NQ + 2, (128 + 8 * (ft + 2)) * NQ)
        S.emit()
        for f in epi([3]):
            f()
        self.flag_off(s(92), F_A, sRb, sFb)
        k.pop()
        k.label(skip)

    def build(self):
        k = self.k
        k.s_cmp_ge_u32(s(2), 256)
        k.s_cbranch_scc1("L_done")
        self.p01()
        self.skinny(True)
        self.p3()
        self.skinny(False)
        k.label("L_done")
        k.s_endpgm()
        k.vgpr, k.accum, k.sgpr = 256, 256, 102
        k.launch = dict(grid=256, block=512, lds=160 * 1024)
        return k


if __name__ == "__main__":
    import sys, gen
    opts = dict(a_.split("=") for a_ in sys.argv[2:] if "=" in a_)
    k = Mega(opts).build()
    open(sys.argv[1], "w").write(gen.build([k]))
    print(k.name, k.ntrace[:20], k.max_regs())
```

```python
from asmdsl import *

KA_X, KA_K, KA_V, KA_WQ, KA_WO, KA_BX, KA_WG, KA_WU, KA_WD, KA_C, KA_WMOD, KA_OUT, KA_DBG, KA_WS = [8 * i for i in
                                                                                                      range(14)]
WS_MOD = 0x0
WS_PT = 0x3C00
WS_U = 0x8000
WS_STATS = 0x10000
WS_UP = 0xA0000
SZ_UP = 4 * 27 * 1024
WS_MP = 0xC0000
SZ_MP = 4 * 1280 * 4
WS_SC = 0xD4000
WS_MB = 0xD8000
WS_MU = 0xD0000
WS_H1 = 0x100000
WS_Y = 0x400000
WS_X1 = 0x700000
WS_A2 = 0xC00000
WS_O = 0x1400000

WS_WOT = 0x2400000
WS_WDT = 0x2A00000
SZ_WOT = 4096 * 640 * 2
SZ_WDT = 1728 * 640 * 2
SZ_MOD = 3840 * 4
SZ_U = 108 * 256
SZ_STATS = 2048 * 64
SZ_H1 = 2048 * 640 * 2
SZ_X1 = 2048 * 640 * 4
SZ_A2 = 2048 * 1728 * 2
SZ_O = 2048 * 4096 * 2

LOG2E = 1.4426950408889634


def f32hex(x):
    import struct
    return "0x%08x" % struct.unpack("<I", struct.pack("<f", x))[0]


def srd(k, dst, base, nbytes, add=0):
    if add:
        k.s_add_u32(dst[0], base[0], hex(add))
        k.s_addc_u32(dst[1], base[1], 0)
    else:
        k.s_mov_b32(dst[0], base[0])
        k.s_mov_b32(dst[1], base[1])
    k.s_mov_b32(dst[2], hex(nbytes))
    k.s_mov_b32(dst[3], "0x20000")


def swap_add(k, x, tmp, which):
    op = "v_permlane16_swap_b32" if which == 16 else "v_permlane32_swap_b32"
    for a_, t_ in zip(x, tmp):
        k.v_mov_b32(t_, a_)
    for a_, t_ in zip(x, tmp):
        k.op(op, a_, t_)
    for a_, t_ in zip(x, tmp):
        k.v_add_f32(a_, a_, t_)


def dpp_add(k, x, ctrl):
    for a_ in x:
        k.v_add_f32_dpp(a_, a_, a_, mods=f"{ctrl} row_mask:0xf bank_mask:0xf")


def unpack_bf16(k, lo, hi, src):
    k.v_lshlrev_b32(lo, 16, src)
    k.v_and_b32(hi, "0xffff0000", src)


WS_DBG = 0x3000000


class Stamps:
    def __init__(self, k, on, sbase=60, n=20):
        self.k, self.on, self.sbase, self.n, self.i = k, on, sbase, n, 0

    def stamp(self, real=False):
        if not self.on:
            return
        assert self.i < self.n
        if real:
            self.k.s_memrealtime(s(self.sbase + 2 * self.i, 2))
        else:
            self.k.s_memtime(s(self.sbase + 2 * self.i, 2))
        self.i += 1

    def dump(self, ws_pair, swave, vt, srd_regs, nwaves=8):
        if not self.on:
            return
        k = self.k
        k.waitcnt(lgkm=0)
        srd(k, srd_regs, ws_pair, 0x100000, WS_DBG)
        k.s_mul_i32(s(3), s(2), nwaves)
        k.s_add_u32(s(3), s(3), swave)
        k.s_lshl_b32(s(3), s(3), 7)
        k.v_mov_b32(vt[0], 0)
        for i in range(self.i):
            k.v_mov_b32(vt[1], s(self.sbase + 2 * i))
            k.buffer_store_dword(vt[1], vt[0], srd_regs, s(3), mods=f"offen offset:{4 * i}")
```

```python
from common import *


class SideJobs:
    def __init__(self, k, sW, nwaves, sregs, vregs, lds_base, ws_pair, extra=None, sc1=False):
        self.k, self.sW, self.nw = k, sW, nwaves
        self.sb, self.vb, self.lds, self.ws = sregs, vregs, lds_base, ws_pair
        self.poff = 0
        self.sc = " sc1" if sc1 else ""
        self.extra = extra or (v(vregs - 1), v(vregs - 2))
        self.PW = s(sregs + 24, 4)
        self.PG = s(sregs + 28, 4)

    def kernargs(self):
        k = self.k
        k.s_load_dwordx2(self.PW[0:2], s(0, 2), KA_WO)
        k.s_load_dwordx2(self.PW[2:4], s(0, 2), KA_WD)
        k.s_load_dwordx4(self.PG, s(0, 2), KA_WG)

    @staticmethod
    def group(fs):
        out = []
        run = []
        for kind, f in fs:
            if kind == 's':
                run.append(f)
            else:
                if run:
                    out.append(lambda run=run: [g() for g in run])
                    run = []
                out.append(f)
        if run:
            out.append(lambda run=run: [g() for g in run])
        return out

    def wt_setup(self, lane, rep=0, nrep=1, jbase=0, jlim=1820, wv=None, wg=None):
        k, sb, vb = self.k, self.sb, self.vb
        SS, SD = s(sb, 4), s(sb + 4, 4)
        P = self.PW
        J, T1, T2, T3, ks, nq, nks, dst = [s(sb + 12 + i) for i in range(8)]
        self.SS, self.SD, self.sSrc, self.sDst = SS, SD, T1, dst
        self.vs, self.va, self.vd = v(vb), v(vb + 1), v(vb + 2)
        tmp = v(vb + 3)
        fs = []
        A = fs.append
        A(('s', lambda: k.s_mul_i32(J, wg if wg is not None else s(2), self.nw)))
        A(('s', lambda: k.s_add_u32(J, J, wv if wv is not None else self.sW)))
        if nrep > 1:
            A(('s', lambda: k.s_mul_i32(J, J, nrep)))
            A(('s', lambda: k.s_add_u32(J, J, rep)))
        if jbase:
            A(('s', lambda: k.s_add_u32(J, J, jbase)))
        A(('s', lambda: k.s_sub_u32(T1, J, 1280)))
        A(('s', lambda: k.s_cmp_lt_u32(J, 1280)))
        A(('s', lambda: k.s_cselect_b32(T1, J, T1)))
        A(('s', lambda: k.s_cselect_b32(nks, 128, 54)))
        A(('s', lambda: k.s_mov_b32(T2, hex(SZ_WDT))))
        A(('s', lambda: k.s_cselect_b32(T2, hex(SZ_WOT), T2)))
        A(('s', lambda: k.s_mov_b32(T3, hex(WS_WDT))))
        A(('s', lambda: k.s_cselect_b32(T3, hex(WS_WOT), T3)))
        A(('s', lambda: k.s_cselect_b32(SS[0], P[0], P[2])))
        A(('s', lambda: k.s_cselect_b32(SS[1], P[1], P[3])))
        A(('s', lambda: k.s_cmp_lt_u32(J, jlim)))
        A(('s', lambda: k.s_cselect_b32(SS[2], T2, 0)))
        A(('s', lambda: k.s_mov_b32(SS[3], "0x20000")))
        A(('s', lambda: k.s_add_u32(SD[0], self.ws[0], T3)))
        A(('s', lambda: k.s_addc_u32(SD[1], self.ws[1], 0)))
        A(('s', lambda: k.s_mov_b32(SD[2], SS[2])))
        A(('s', lambda: k.s_mov_b32(SD[3], "0x20000")))
        A(('s', lambda: k.s_mul_hi_u32(ks, T1, hex((2 ** 32 + 9) // 10))))
        A(('s', lambda: k.s_mul_i32(nq, ks, 10)))
        A(('s', lambda: k.s_sub_u32(nq, T1, nq)))
        self.ks, self.nq, self.nks = ks, nq, nks
        A(('s', lambda: k.s_mul_i32(T1, ks, 32 * 1280)))
        A(('s', lambda: k.s_lshl_b32(T2, nq, 7)))
        A(('s', lambda: k.s_add_u32(T1, T1, T2)))
        A(('v', lambda: k.v_lshrrev_b32(tmp, 3, lane)))
        A(('v', lambda: k.v_mul_u32_u24(self.vs, 1280, tmp)))
        A(('v', lambda: k.v_and_b32(tmp, 7, lane)))
        A(('v', lambda: k.v_lshl_add_u32(self.vs, tmp, 4, self.vs)))
        A(('v', lambda: k.v_lshrrev_b32(self.va, 2, lane)))
        A(('v', lambda: k.v_lshlrev_b32(self.va, 7, self.va)))
        A(('v', lambda: k.v_and_b32(tmp, 3, lane)))
        A(('v', lambda: k.v_lshl_add_u32(self.va, tmp, 3, self.va)))
        A(('s', lambda: k.s_lshl_b32(T3, wv if wv is not None else self.sW, 12)))
        A(('s', lambda: k.s_add_u32(T3, T3, hex(self.lds))))
        A(('v', lambda: k.v_add_u32(self.va, T3, self.va)))
        A(('v', lambda: k.v_lshlrev_b32(self.vd, 4, lane)))
        self.sLds = T3
        return self.group(fs)

    def wt_dma(self, i):
        k = self.k
        T = s(self.sb + 20)

        def f():
            k.s_add_u32("m0", self.sLds, i * 1024)
            k.s_add_u32(T, self.sSrc, i * 8 * 1280)
            k.buffer_load_dwordx4(self.vs, self.SS, T, mods="offen lds", tag="WT")
        return f

    def wt_read(self, i, first=False):
        k = self.k
        F = v(self.vb + 4 + 4 * i, 4)

        def f():
            if first:
                k.need("WT")
            for rd in range(2):
                k.ds_read_b64_tr_b16(F[2 * rd:2 * rd + 2], self.va, mods=f"offset:{i * 32 + rd * 2048}")
        return f

    def wt_store(self, i):
        k = self.k
        F = v(self.vb + 4 + 4 * i, 4)
        T, U_, cb = s(self.sb + 20), s(self.sb + 21), s(self.sb + 22)

        def f():
            k.s_lshl_b32(T, self.nq, 2)
            k.s_add_u32(T, T, i)
            k.s_mul_i32(cb, T, 52429)
            k.s_lshr_b32(cb, cb, 18)
            k.s_mul_i32(U_, cb, 5)
            k.s_sub_u32(T, T, U_)
            k.s_mul_i32(U_, cb, self.nks)
            k.s_add_u32(U_, U_, self.ks)
            k.s_mul_i32(U_, U_, 5)
            k.s_add_u32(T, T, U_)
            k.s_lshl_b32(T, T, 10)
            k.buffer_store_dwordx4(F, self.vd, self.SD, T, mods="offen sc1", tag="SJ")
        return f

    def u_setup(self, tid):
        k, sb, vb = self.k, self.sb, self.vb
        SW_, SM, SU = s(sb, 4), s(sb + 4, 4), s(sb + 8, 4)
        P = self.PG
        ft, mat, T, sP = [s(sb + 16 + i) for i in range(4)]
        self.SWu, self.SMu, self.SUu, self.ft, self.mat, self.sP = SW_, SM, SU, ft, mat, sP
        self.uvo, self.upo, self.ula = v(vb), v(vb + 1), v(vb + 2)
        tmp = v(vb + 3)
        half = self.nw // 2
        fs = []
        A = fs.append
        A(('s', lambda: k.s_cmp_ge_u32(s(2), 108)))
        A(('s', lambda: k.s_cselect_b32(mat, 1, 0)))
        A(('s', lambda: k.s_cselect_b32(T, 108, 0)))
        A(('s', lambda: k.s_cselect_b32(SW_[0], P[2], P[0])))
        A(('s', lambda: k.s_cselect_b32(SW_[1], P[3], P[1])))
        A(('s', lambda: k.s_sub_u32(ft, s(2), T)))
        A(('s', lambda: k.s_cmp_lt_u32(s(2), 216)))
        A(('s', lambda: k.s_cselect_b32(SW_[2], hex(640 * 3456), 0)))
        A(('s', lambda: k.s_cselect_b32(SU[2], hex(SZ_U), 0)))
        A(('s', lambda: k.s_mov_b32(SW_[3], "0x20000")))
        A(('s', lambda: k.s_mov_b32(SM[0], self.ws[0])))
        A(('s', lambda: k.s_mov_b32(SM[1], self.ws[1])))
        A(('s', lambda: k.s_mov_b32(SM[2], hex(SZ_MOD))))
        A(('s', lambda: k.s_mov_b32(SM[3], "0x20000")))
        A(('s', lambda: k.s_add_u32(SU[0], self.ws[0], hex(WS_U))))
        A(('s', lambda: k.s_addc_u32(SU[1], self.ws[1], 0)))
        A(('s', lambda: k.s_mov_b32(SU[3], "0x20000")))
        A(('s', lambda: k.s_cmp_lt_u32(self.sW, half)))
        A(('s', lambda: k.s_movk_i32(T, 1920 * 4)))
        A(('s', lambda: k.s_cselect_b32(sP, 2560 * 4, T)))
        A(('v', lambda: k.v_bfe_u32(tmp, tid, 1, 7 if self.nw == 8 else 6)))
        A(('v', lambda: k.v_mul_u32_u24(self.uvo, 3456, tmp)))
        A(('v', lambda: k.v_lshlrev_b32(self.upo, 2, tmp)))
        A(('v', lambda: k.v_and_b32(tmp, 1, tid)))
        A(('v', lambda: k.v_lshl_add_u32(self.uvo, tmp, 4, self.uvo)))
        A(('s', lambda: k.s_lshl_b32(T, ft, 5)))
        A(('v', lambda: k.v_add_u32(self.uvo, T, self.uvo)))
        A(('s', lambda: k.s_lshl_b32(T, self.sW, 6)))
        A(('s', lambda: k.s_add_u32(T, T, hex(self.lds))))
        A(('v', lambda: k.v_lshlrev_b32(self.ula, 5, tmp)))
        A(('v', lambda: k.v_add_u32(self.ula, T, self.ula)))
        return self.group(fs)

    def ubuf(self, i):
        vb = self.vb
        return (v(vb + 4, 4), self.extra[0]) if i % 2 == 0 else (v(vb + 24, 4), self.extra[1])

    def u_load(self, i):
        k, vb = self.k, self.vb
        W, Pm = self.ubuf(i)
        T = s(self.sb + 20)

        def f():
            k.s_mov_b32(T, hex(i * 16 * self.nw * 3456))
            k.buffer_load_dwordx4(W, self.uvo, self.SWu, T, mods="offen")
            k.buffer_load_dword(Pm, self.upo, self.SMu, self.sP, mods=f"offen offset:{i * 64 * self.nw}" + self.sc)
        return f

    def u_fma(self, i):
        k, vb = self.k, self.vb
        W, Pm = self.ubuf(i)
        acc = [v(vb + 8 + j) for j in range(8)]
        tmp = [v(vb + 16 + j) for j in range(8)]
        fs = []
        for j in range(4):
            fs.append(lambda j=j: k.v_lshlrev_b32(tmp[2 * j], 16, W[j]))
            fs.append(lambda j=j: k.v_and_b32(tmp[2 * j + 1], "0xffff0000", W[j]))
        for j in range(8):
            if i == 0:
                fs.append(lambda j=j: k.v_mul_f32(acc[j], Pm, tmp[j]))
            else:
                fs.append(lambda j=j: k.v_fmac_f32(acc[j], Pm, tmp[j]))
        return fs

    def u_reduce(self):
        k, vb = self.k, self.vb
        acc = [v(vb + 8 + j) for j in range(8)]
        tmp = [v(vb + 16 + j) for j in range(8)]
        fs = []
        for ctrl in ("quad_perm:[2,3,0,1]", "row_ror:4", "row_ror:8"):
            for a_ in acc:
                fs.append(lambda a_=a_, ctrl=ctrl: k.v_add_f32_dpp(a_, a_, a_, mods=f"{ctrl} row_mask:0xf bank_mask:0xf"))
        for op in ("v_permlane16_swap_b32", "v_permlane32_swap_b32"):
            for a_, t_ in zip(acc, tmp):
                fs.append(lambda a_=a_, t_=t_: k.v_mov_b32(t_, a_))
            for a_, t_ in zip(acc, tmp):
                fs.append(lambda a_=a_, t_=t_, op=op: k.op(op, a_, t_))
            for a_, t_ in zip(acc, tmp):
                fs.append(lambda a_=a_, t_=t_: k.v_add_f32(a_, a_, t_))
        fs.append(lambda: k.ds_write_b128(self.ula, v(vb + 8, 4)))
        fs.append(lambda: k.ds_write_b128(self.ula, v(vb + 12, 4), mods="offset:16"))
        return fs

    def u_final(self, lane):
        k, vb = self.k, self.vb
        half = self.nw // 2
        col, ad = v(vb), v(vb + 1)
        tmp = [v(vb + 16 + j) for j in range(8)]
        T, T2 = s(self.sb + 20), s(self.sb + 21)
        fs = []
        A = fs.append
        A(lambda: k.v_and_b32(col, 31, lane))
        A(lambda: k.v_lshlrev_b32(col, 2, col))
        A(lambda: k.v_bfe_u32(ad, lane, 4, 1))
        A(lambda: k.v_mul_u32_u24(ad, 64 * half - 64, ad))
        A(lambda: k.v_add_u32(ad, ad, col))
        A(lambda: k.v_add_u32(ad, hex(self.lds), ad))
        for w in range(half):
            A(lambda w=w: k.ds_read_b32(tmp[w], ad, mods=f"offset:{w * 64}"))
        for w in range(1, half):
            A(lambda w=w: k.v_add_f32(tmp[0], tmp[0], tmp[w]))

        def fin():
            k.s_lshl_b32(T, self.ft, 8)
            k.s_lshl_b32(T2, self.mat, 7)
            k.s_add_u32(T, T, T2)
            k.s_cmp_eq_u32(self.sW, 0)
            k.s_cselect_b32(T, T, "0x7fff0000")
            k.s_mov_b64("exec", "0xffffffff")
            k.buffer_store_dword(tmp[0], col, self.SUu, T, mods="offen" + self.sc, tag="SJ")
            k.s_mov_b64("exec", -1)
        A(fin)
        return fs

    def m_setup(self, tid, PC):
        k, sb, vb = self.k, self.sb, self.vb
        SW_, SC_, SM = s(sb, 4), s(sb + 4, 4), s(sb + 8, 4)
        cbk, T = s(sb + 12), s(sb + 13)
        self.mS = (SW_, SC_, SM, cbk)
        self.mvo, self.mco, self.mla = v(vb), v(vb + 1), v(vb + 2)
        tmp = v(vb + 3)
        fs = []
        A = fs.append
        A(('s', lambda: k.s_and_b32(cbk, s(2), 7)))
        A(('s', lambda: k.s_mul_i32(cbk, cbk, 20)))
        A(('s', lambda: k.s_lshr_b32(T, s(2), 3)))
        A(('s', lambda: k.s_add_u32(cbk, cbk, T)))
        A(('s', lambda: k.s_add_u32(cbk, cbk, 68)))
        A(('s', lambda: k.s_cmp_ge_u32(T, 12)))
        A(('s', lambda: k.s_cselect_b32(SW_[2], hex(640 * 7680), 0)))
        A(('s', lambda: k.s_cselect_b32(SM[2], hex(WS_MB + 7680), 0)))
        A(('s', lambda: k.s_mov_b32(SW_[0], PC[2])))
        A(('s', lambda: k.s_mov_b32(SW_[1], PC[3])))
        A(('s', lambda: k.s_mov_b32(SW_[3], "0x20000")))
        A(('s', lambda: k.s_mov_b32(SC_[0], PC[0])))
        A(('s', lambda: k.s_mov_b32(SC_[1], PC[1])))
        A(('s', lambda: k.s_movk_i32(SC_[2], 1280)))
        A(('s', lambda: k.s_mov_b32(SC_[3], "0x20000")))
        A(('s', lambda: k.s_mov_b32(SM[0], self.ws[0])))
        A(('s', lambda: k.s_mov_b32(SM[1], self.ws[1])))
        A(('s', lambda: k.s_mov_b32(SM[3], "0x20000")))
        A(('v', lambda: k.v_lshrrev_b32(tmp, 1, tid)))
        A(('v', lambda: k.v_mul_u32_u24(self.mvo, 7680, tmp)))
        A(('v', lambda: k.v_lshlrev_b32(self.mco, 1, tmp)))
        A(('v', lambda: k.v_and_b32(tmp, 1, tid)))
        A(('v', lambda: k.v_lshl_add_u32(self.mvo, tmp, 4, self.mvo)))
        A(('s', lambda: k.s_lshl_b32(T, cbk, 5)))
        A(('v', lambda: k.v_add_u32(self.mvo, T, self.mvo)))
        A(('s', lambda: k.s_lshl_b32(T, self.sW, 6)))
        A(('s', lambda: k.s_add_u32(T, T, hex(self.lds + self.poff))))
        A(('v', lambda: k.v_lshlrev_b32(self.mla, 5, tmp)))
        A(('v', lambda: k.v_add_u32(self.mla, T, self.mla)))
        return self.group(fs)

    def m_load(self, i):
        k = self.k
        W, Pm = self.ubuf(i)
        T = s(self.sb + 20)

        def f():
            k.s_mov_b32(T, hex(i * 256 * 7680))
            k.buffer_load_dwordx4(W, self.mvo, self.mS[0], T, mods="offen")
            k.buffer_load_ushort(Pm, self.mco, self.mS[1], 0, mods=f"offen offset:{i * 512}")
        return f

    def m_fma(self, i):
        k, vb = self.k, self.vb
        W, Pm = self.ubuf(i)
        e = v(vb + 3)
        fs = [lambda: k.v_lshlrev_b32(Pm, 16, Pm),
              lambda: k.v_mul_f32(e, f32hex(-LOG2E), Pm),
              lambda: k.v_exp_f32(e, e),
              lambda: k.v_add_f32(e, 1.0, e),
              lambda: k.v_rcp_f32(e, e),
              lambda: k.v_mul_f32(Pm, Pm, e),
              lambda: k.v_cvt_pk_bf16_f32(Pm, Pm, Pm),
              lambda: k.v_lshlrev_b32(Pm, 16, Pm)]
        return fs + self.u_fma(i)

    def m_reduce(self):
        self.ula = self.mla
        return self.u_reduce()

    def m_final(self, lane):
        k, vb = self.k, self.vb
        col, ad = v(vb), v(vb + 1)
        tmp = [v(vb + 16 + j) for j in range(8)]
        T, T2 = s(self.sb + 20), s(self.sb + 21)
        cbk = self.mS[3]
        fs = []
        A = fs.append
        A(lambda: k.v_and_b32(col, 15, lane))
        A(lambda: k.v_lshlrev_b32(col, 2, col))
        A(lambda: k.v_add_u32(ad, hex(self.lds + self.poff), col))
        for w in range(8):
            A(lambda w=w: k.ds_read_b32(tmp[w], ad, mods=f"offset:{w * 64}"))
        for a_, b_ in ((0, 1), (2, 3), (4, 5), (6, 7), (0, 2), (4, 6), (0, 4)):
            A(lambda a_=a_, b_=b_: k.v_add_f32(tmp[a_], tmp[a_], tmp[b_]))
        A(lambda: k.v_cvt_pk_bf16_f32(tmp[0], tmp[0], tmp[0]))
        A(lambda: k.v_lshlrev_b32(tmp[0], 16, tmp[0]))
        A(lambda: k.v_add_f32(tmp[1], 1.0, tmp[0]))
        A(lambda: k.v_cvt_pk_bf16_f32(tmp[1], tmp[1], tmp[1]))
        A(lambda: k.v_lshlrev_b32(tmp[1], 16, tmp[1]))

        def fin():
            k.s_sub_u32(T, cbk, 160)
            k.s_cmp_lt_u32(T, 40)
            k.s_cselect_b64(s(self.sb + 22, 2), -1, 0)
            k.v_cndmask_b32(tmp[0], tmp[0], tmp[1], s(self.sb + 22, 2))
            k.s_lshl_b32(T, cbk, 6)
            k.s_cmp_eq_u32(self.sW, 0)
            k.s_cselect_b32(T, T, "0x7fff0000")
            k.s_mov_b64("exec", "0xffff")
            k.buffer_store_dword(tmp[0], col, self.mS[2], T, mods="offen sc1", tag="SJ")
            k.s_lshr_b32(T2, T, 1)
            k.s_add_u32(T2, T2, hex(WS_MB))
            k.v_lshrrev_b32(ad, 1, col)
            k.buffer_store_short_d16_hi(tmp[0], ad, self.mS[2], T2, mods="offen sc1", tag="SJ")
            k.s_mov_b64("exec", -1)
        A(fin)
        return fs

    def u2_setup(self, tid, PG):
        k, sb, vb = self.k, self.sb, self.vb
        SW_, SM, SU = s(sb, 4), s(sb + 4, 4), s(sb + 8, 4)
        mat, fb, kq, T, sP, sF = [s(sb + 12 + i) for i in range(6)]
        self.SWu, self.SMu, self.SUu, self.mat, self.fb, self.kq, self.sP, self.sF = SW_, SM, SU, mat, fb, kq, sP, sF
        self.uvo, self.upo, self.ula = v(vb), v(vb + 1), v(vb + 2)
        tmp = v(vb + 3)
        fs = []
        A = fs.append
        A(('s', lambda: k.s_cmp_ge_u32(s(2), 108)))
        A(('s', lambda: k.s_cselect_b32(mat, 1, 0)))
        A(('s', lambda: k.s_cselect_b32(T, 108, 0)))
        A(('s', lambda: k.s_cselect_b32(SW_[0], PG[2], PG[0])))
        A(('s', lambda: k.s_cselect_b32(SW_[1], PG[3], PG[1])))
        A(('s', lambda: k.s_sub_u32(T, s(2), T)))
        A(('s', lambda: k.s_lshr_b32(fb, T, 2)))
        A(('s', lambda: k.s_and_b32(kq, T, 3)))
        A(('s', lambda: k.s_cmp_lt_u32(s(2), 216)))
        A(('s', lambda: k.s_cselect_b32(SW_[2], hex(640 * 3456), 0)))
        A(('s', lambda: k.s_cselect_b32(SU[2], hex(SZ_UP), 0)))
        A(('s', lambda: k.s_mov_b32(SW_[3], "0x20000")))
        A(('s', lambda: k.s_mov_b32(SM[0], self.ws[0])))
        A(('s', lambda: k.s_mov_b32(SM[1], self.ws[1])))
        A(('s', lambda: k.s_mov_b32(SM[2], hex(SZ_MOD))))
        A(('s', lambda: k.s_mov_b32(SM[3], "0x20000")))
        A(('s', lambda: k.s_add_u32(SU[0], self.ws[0], hex(WS_UP))))
        A(('s', lambda: k.s_addc_u32(SU[1], self.ws[1], 0)))
        A(('s', lambda: k.s_mov_b32(SU[3], "0x20000")))
        A(('s', lambda: k.s_cmp_lt_u32(self.sW, 4)))
        A(('s', lambda: k.s_movk_i32(T, 1920 * 4)))
        A(('s', lambda: k.s_cselect_b32(sP, 2560 * 4, T)))
        A(('s', lambda: k.s_lshl_b32(sF, fb, 7)))
        A(('s', lambda: k.s_mul_i32(T, kq, 160)))
        A(('v', lambda: k.v_bfe_u32(tmp, tid, 3, 5)))
        A(('v', lambda: k.v_add_u32(tmp, T, tmp)))
        A(('v', lambda: k.v_mul_u32_u24(self.uvo, 3456, tmp)))
        A(('v', lambda: k.v_lshlrev_b32(self.upo, 2, tmp)))
        A(('v', lambda: k.v_and_b32(tmp, 7, tid)))
        A(('v', lambda: k.v_lshl_add_u32(self.uvo, tmp, 4, self.uvo)))
        A(('s', lambda: k.s_lshl_b32(T, self.sW, 8)))
        A(('s', lambda: k.s_add_u32(T, T, hex(self.lds + self.poff))))
        A(('v', lambda: k.v_lshlrev_b32(self.ula, 5, tmp)))
        A(('v', lambda: k.v_add_u32(self.ula, T, self.ula)))
        return self.group(fs)

    def u2_load(self, i):
        k = self.k
        W, Pm = self.ubuf(i)
        T = s(self.sb + 20)

        def f():
            k.s_add_u32(T, self.sF, hex(i * 32 * 3456))
            k.buffer_load_dwordx4(W, self.uvo, self.SWu, T, mods="offen")
            k.buffer_load_dword(Pm, self.upo, self.SMu, self.sP, mods=f"offen offset:{i * 128} sc1")
        return f

    def u2_reduce(self):
        fs = self.u_reduce()
        return fs[16:]

    def u2_final(self, lane):
        k, vb = self.k, self.vb
        ad, oa = v(vb), v(vb + 1)
        tmp = [v(vb + 16 + j) for j in range(8)]
        T, T2 = s(self.sb + 20), s(self.sb + 21)
        fs = []
        A = fs.append

        def pre():
            k.s_and_b32(T, self.sW, 1)
            k.s_lshl_b32(T, T, 10)
            k.s_add_u32(T, T, hex(self.lds + self.poff))
            k.v_lshlrev_b32(ad, 2, lane)
            k.v_add_u32(ad, T, ad)
        A(pre)
        for w in range(4):
            A(lambda w=w: k.ds_read_b32(tmp[w], ad, mods=f"offset:{w * 256}"))
        A(lambda: k.v_lshrrev_b32(oa, 4, lane))
        A(lambda: k.v_lshlrev_b32(oa, 8, oa))
        A(lambda: k.v_and_b32(tmp[4], 15, lane))
        A(lambda: k.v_lshl_add_u32(oa, tmp[4], 2, oa))
        A(lambda: k.v_add_f32(tmp[0], tmp[0], tmp[1]))
        A(lambda: k.v_add_f32(tmp[2], tmp[2], tmp[3]))
        A(lambda: k.v_add_f32(tmp[0], tmp[0], tmp[2]))

        def fin():
            k.s_mul_i32(T, self.kq, 27)
            k.s_add_u32(T, T, self.fb)
            k.s_lshl_b32(T, T, 10)
            k.s_lshl_b32(T2, self.mat, 1)
            k.s_add_u32(T2, T2, self.sW)
            k.s_lshl_b32(T2, T2, 6)
            k.s_add_u32(T, T, T2)
            k.s_cmp_lt_u32(self.sW, 2)
            k.s_cselect_b32(T, T, "0x7fff0000")
            k.buffer_store_dword(tmp[0], oa, self.SUu, T, mods="offen sc1", tag="SJ")
        A(fin)
        return fs

    def m3_dma(self, i):
        k = self.k
        T = s(self.sb + 20)

        def f():
            k.s_lshl_b32(T, self.sW, 10)
            k.s_add_u32("m0", T, hex(self.lds + i * 8192))
            k.s_mov_b32(T, hex(i * 256 * 7680))
            k.buffer_load_dwordx4(self.mvo, self.mS[0], T, mods="offen lds", tag="MD")
            k.buffer_load_ushort(v(self.vb + 24 + i), self.mco, self.mS[1], 0, mods=f"offen offset:{i * 512}")
        return f

    def stage_addr(self, lane, wmask):
        k = self.k
        T = s(self.sb + 20)

        def f():
            k.s_and_b32(T, self.sW, wmask)
            k.s_lshl_b32(T, T, 10)
            k.s_add_u32(T, T, hex(self.lds))
            k.v_lshlrev_b32(v(self.vb), 4, lane)
            k.v_add_u32(v(self.vb), T, v(self.vb))
        return f

    def st_read(self, i, stride, tag=None):
        k = self.k

        def f():
            if tag:
                k.need(tag)
            k.ds_read_b128(v(self.vb + 4, 4), v(self.vb), mods=f"offset:{i * stride}")
        return f

    def st_fma(self, i, Pm, silu):
        k, vb = self.k, self.vb
        W = v(vb + 4, 4)
        e = v(vb + 3)
        acc = [v(vb + 8 + j) for j in range(8)]
        tmp = [v(vb + 16 + j) for j in range(8)]
        fs = []
        if silu:
            fs = [lambda: k.v_lshlrev_b32(Pm, 16, Pm),
                  lambda: k.v_mul_f32(e, f32hex(-LOG2E), Pm),
                  lambda: k.v_exp_f32(e, e),
                  lambda: k.v_add_f32(e, 1.0, e),
                  lambda: k.v_rcp_f32(e, e),
                  lambda: k.v_mul_f32(Pm, Pm, e),
                  lambda: k.v_cvt_pk_bf16_f32(Pm, Pm, Pm),
                  lambda: k.v_lshlrev_b32(Pm, 16, Pm)]
        for j in range(4):
            fs.append(lambda j=j: k.v_lshlrev_b32(tmp[2 * j], 16, W[j]))
            fs.append(lambda j=j: k.v_and_b32(tmp[2 * j + 1], "0xffff0000", W[j]))
        for j in range(8):
            if i == 0:
                fs.append(lambda j=j: k.v_mul_f32(acc[j], Pm, tmp[j]))
            else:
                fs.append(lambda j=j: k.v_fmac_f32(acc[j], Pm, tmp[j]))
        return fs

    def u3_dma(self, n):
        k = self.k
        T, T2 = s(self.sb + 20), s(self.sb + 21)

        def f():
            k.s_lshr_b32(T2, self.sW, 2)
            k.s_add_u32(T2, T2, 2 * n)
            k.s_lshl_b32(T, T2, 2)
            k.s_and_b32(s(self.sb + 22), self.sW, 3)
            k.s_add_u32(T, T, s(self.sb + 22))
            k.s_lshl_b32(T, T, 10)
            k.s_add_u32("m0", T, hex(self.lds))
            k.s_mul_i32(T, T2, 32 * 3456)
            k.s_add_u32(T, T, self.sF)
            if n == 2:
                k.s_cmp_lt_u32(T2, 5)
                k.s_cselect_b32(T, T, "0x7fff0000")
            k.buffer_load_dwordx4(self.uvo, self.SWu, T, mods="offen lds", tag="UD")
        return f

    def u3_params(self, regs):
        k = self.k

        def f():
            for i, r_ in enumerate(regs):
                k.buffer_load_dword(r_, self.upo, self.SMu, self.sP, mods=f"offen offset:{i * 128} sc1")
        return f

    MFS = "v_mfma_f32_16x16x32_bf16"

    def m4_setup(self, tid, lane, PC):
        k, sb, vb = self.k, self.sb, self.vb
        fs = self.m_setup(tid, PC)
        SC_ = self.mS[1]
        T = s(sb + 13)

        def fix():
            k.s_add_u32(SC_[0], self.ws[0], hex(WS_SC))
            k.s_addc_u32(SC_[1], self.ws[1], 0)
            k.s_lshl_b32(T, self.sW, 6)
            k.v_lshrrev_b32(self.mco, 4, lane)
            k.v_lshlrev_b32(self.mco, 4, self.mco)
            k.v_add_u32(self.mco, T, self.mco)
            k.v_add_u32(self.mla, hex(self.lds + self.poff), self.mco)
        return fs + [fix]

    def m4_dma(self, i):
        k = self.k
        T = s(self.sb + 20)

        def f():
            k.s_lshl_b32(T, self.sW, 10)
            k.s_add_u32("m0", T, hex(self.lds + i * 8192))
            k.s_mov_b32(T, hex(i * 256 * 7680))
            k.buffer_load_dwordx4(self.mvo, self.mS[0], T, mods="offen lds", tag="MD")
            k.buffer_load_dwordx4(v(self.vb + 12 + 4 * i, 4), self.mco, self.mS[1], 0, mods=f"offen offset:{i * 512} sc1")
        return f

    def tr_addr(self, lane, pitch_log2, wshift, wmask):
        k = self.k
        T = s(self.sb + 20)
        A_, tmp = v(self.vb), v(self.vb + 3)

        def f():
            k.s_and_b32(T, self.sW, wmask)
            k.s_lshl_b32(T, T, wshift)
            k.s_add_u32(T, T, hex(self.lds))
            k.v_lshrrev_b32(A_, 4, lane)
            k.v_bfe_u32(tmp, lane, 2, 2)
            k.v_lshl_add_u32(A_, A_, 3, tmp)
            k.v_lshlrev_b32(A_, pitch_log2, A_)
            k.v_and_b32(tmp, 3, lane)
            k.v_lshl_add_u32(A_, tmp, 3, A_)
            k.v_add_u32(A_, T, A_)
        return f

    def tr_read(self, off, pitch, tag=None):
        k = self.k
        W = v(self.vb + 4, 4)

        def f():
            if tag:
                k.need(tag)
            for rd in range(2):
                k.ds_read_b64_tr_b16(W[2 * rd:2 * rd + 2], v(self.vb), mods=f"offset:{off + rd * 4 * pitch}")
        return f

    def mm(self, i, B):
        k = self.k
        acc = v(self.vb + 8, 4)
        return lambda: k.op(self.MFS, acc, v(self.vb + 4, 4), B, 0 if i == 0 else acc)

    def m4_write(self):
        k = self.k
        return lambda: k.ds_write_b128(self.mla, v(self.vb + 8, 4))

    def u4_setup(self, tid, lane, PG):
        k, sb, vb = self.k, self.sb, self.vb
        fs = self.u2_setup(tid, PG)
        T = s(sb + 15)

        def fix():
            k.s_add_u32(self.SMu[0], self.ws[0], hex(WS_MB))
            k.s_addc_u32(self.SMu[1], self.ws[1], 0)
            k.s_mul_i32(T, self.kq, 320)
            k.s_add_u32(T, T, 5120)
            k.v_lshrrev_b32(self.upo, 4, lane)
            k.v_lshlrev_b32(self.upo, 4, self.upo)
            k.v_add_u32(self.upo, T, self.upo)
            k.v_and_b32(self.ula, 1, lane)
            k.v_mul_u32_u24(self.ula, 1280, self.ula)
            k.v_sub_u32(self.upo, self.upo, self.ula)
            k.v_and_b32(self.ula, 1, lane)
            k.v_lshlrev_b32(self.ula, 6, self.ula)
            k.v_lshrrev_b32(v(vb + 3), 4, lane)
            k.v_lshl_add_u32(self.ula, v(vb + 3), 4, self.ula)
        return fs + [fix]

    def u4_B(self, i):
        return v(self.vb + 12 + 4 * i, 4) if i < 4 else v(4, 4)

    def u4_params(self):
        k = self.k

        def f():
            for i in range(5):
                k.buffer_load_dwordx4(self.u4_B(i), self.upo, self.SMu, 0, mods=f"offen offset:{i * 64} sc1")
        return f

    def u4_store(self):
        k = self.k
        T, T2 = s(self.sb + 20), s(self.sb + 21)

        def f():
            k.s_mul_i32(T, self.kq, 27)
            k.s_add_u32(T, T, self.fb)
            k.s_lshl_b32(T, T, 2)
            k.s_add_u32(T, T, self.sW)
            k.s_lshl_b32(T, T, 8)
            k.s_lshl_b32(T2, self.mat, 7)
            k.s_add_u32(T, T, T2)
            k.s_cmp_lt_u32(self.sW, 4)
            k.s_cselect_b32(T, T, "0x7fff0000")
            k.s_mov_b32("exec_lo", "0x00030003")
            k.s_mov_b32("exec_hi", "0x00030003")
            k.buffer_store_dwordx4(v(self.vb + 8, 4), self.ula, self.SUu, T, mods="offen sc1", tag="SJ")
            k.s_mov_b64("exec", -1)
        return f
```

```python
from common import *
from k1 import Sched
from side import SideJobs

MF = "v_mfma_f32_16x16x32_bf16"
SLOT = 16384
PT_LDS = 9 * SLOT
P0_LDS = 150 * 1024
X1_LDS = 132 * 1024
THRESH = 2.0 ** 64
NAME = "adaLN_cond__sliding_block_cached__swiglu_ffn__prompt_kernel"

sW = s(93)
WS = s(94, 2)
DBGP = s(96, 2)
EPOCH = s(98)
SDBG = s(56, 4)
SF = s(4, 4)
WS_FLG = 0x380000
FSH = 7
FPH = 512 << FSH
FSZ = 8 * FPH
F_X, F_M, F_O, F_Y, F_A, F_S, F_N, F_D = range(8)
D_M2, D_S = 128, 144


class Mega:
    def __init__(self, opts):
        self.o = opts
        scen = []
        for w in (0, 1, 2, 3, 4, 5):
            role = "ln" if w < 2 else "modf" if w == 2 else "mod"
            act = "long" if w < 2 else "short" if w < 4 else "idle"
            for p3 in (1, 0):
                for odd in (0, 1):
                    scen.append(dict(w=w, role=role, act=act, p3=p3, odd=odd, w0=(w == 0), w5=(role == "modf")))
        self.k = Kernel(NAME, scenarios=scen)
        self.nst = 0

    def opt(self, n, d):
        return int(self.o.get(n, d))

    def stamp(self, src=None):
        if not self.opt("st", 0):
            return
        k = self.k
        if src is None:
            k.s_memrealtime(s(100, 2))
        else:
            k.waitcnt(lgkm=0)
            k.s_mov_b32(s(100), s(src))
        srd(k, s(4, 4), WS, 0x100000, WS_DBG)
        k.s_lshl_b32(s(3), s(2), 3)
        k.s_add_u32(s(3), s(3), sW)
        k.s_lshl_b32(s(3), s(3), 7)
        k.v_mov_b32(v(255), 0)
        k.waitcnt(lgkm=0)
        k.v_mov_b32(v(254), s(100))
        k.buffer_store_dword(v(254), v(255), s(4, 4), s(3), mods=f"offen offset:{4 * self.nst}")
        self.nst += 1

    def stamp2(self):
        if self.opt("st", 0) != 2:
            return
        k = self.k
        self.stamp()
        k.s_memtime(s(100, 2))
        k.waitcnt(lgkm=0)
        k.v_mov_b32(v(254), s(100))
        k.buffer_store_dword(v(254), v(255), s(4, 4), s(3), mods=f"offen offset:{4 * self.nst}")
        self.nst += 1

    def flag_off(self, dst, ph, line, idx):
        k = self.k
        k.s_lshl_b32(dst, line, 6)
        k.s_add_u32(dst, dst, idx)
        k.s_lshl_b32(dst, dst, FSH)
        k.s_add_u32(dst, dst, hex(ph * FPH))

    def set_flag(self, off, va, vb):
        k = self.k
        srd(k, SF, WS, FSZ, WS_FLG)
        k.s_mov_b64("exec", 1)
        k.v_mov_b32(va, EPOCH)
        k.v_mov_b32(vb, 0)
        k.buffer_store_dword(va, vb, SF, off, mods="offen sc1")
        k.s_mov_b64("exec", -1)

    def signal(self, off, va, vb):
        k = self.k
        k.s_barrier()
        skip = k.newlabel()
        k.s_cmp_lg_u32(sW, 0)
        k.s_cbranch_scc1(skip)
        k.push(If(lambda sc: sc["w0"]))
        self.set_flag(off, va, vb)
        k.pop()
        k.label(skip)

    def count(self, off, va, vb):
        k = self.k
        skip = k.newlabel()
        k.s_cmp_lg_u32(sW, 0)
        k.s_cbranch_scc1(skip)
        k.push(If(lambda sc: sc["w0"]))
        k.s_mov_b64("exec", 1)
        k.v_mov_b32(va, 1)
        k.v_mov_b32(vb, 0)
        k.buffer_atomic_add(va, vb, SDBG, off, mods="offen")
        k.s_mov_b64("exec", -1)
        k.pop()
        k.label(skip)

    def poll(self, addrs, dsts, srd_, cmp):
        k = self.k
        out = k.newlabel()
        k.s_mov_b32(s(3), 60000)
        L = k.label()
        for a_, d_ in zip(addrs, dsts):
            k.buffer_load_dword(d_, a_, srd_, 0, mods="offen sc1")
        for i, d_ in enumerate(dsts):
            cmp(d_)
            if len(dsts) > 1:
                if i == 0:
                    k.s_mov_b64(s(100, 2), "vcc")
                else:
                    k.s_or_b64(s(100, 2), s(100, 2), "vcc")
        if len(dsts) > 1:
            k.s_mov_b64("vcc", s(100, 2))
        k.s_cbranch_vccz(out)
        k.s_sleep(self.opt("sleep", 1))
        k.s_sub_u32(s(3), s(3), 1)
        k.s_cmp_lg_u32(s(3), 0)
        k.s_cbranch_scc1(L)
        k.label(out)

    def wait(self, setup, addrs, dsts, counters=None, pw=0):
        k = self.k
        skip = k.newlabel()
        k.s_cmp_lg_u32(sW, pw)
        k.s_cbranch_scc1(skip)
        k.push(If(lambda sc: sc["w"] == pw))
        setup()
        if counters is None:
            srd(k, SF, WS, FSZ, WS_FLG)
            self.poll(addrs, dsts, SF, lambda d_: k.v_cmp_ne_u32("vcc", EPOCH, d_))
        else:
            self.poll(addrs, dsts, SDBG, lambda d_: k.v_cmp_gt_u32("vcc", counters, d_))
        k.pop()
        k.label(skip)
        k.s_barrier()

    def early_check(self, pw, setup, addrs, dsts):
        k = self.k

        def issue():
            skip = k.newlabel()
            k.s_cmp_lg_u32(sW, pw)
            k.s_cbranch_scc1(skip)
            k.push(If(lambda sc: sc["w"] == pw))
            setup()
            srd(k, SF, WS, FSZ, WS_FLG)
            for a_, d_ in zip(addrs, dsts):
                k.buffer_load_dword(d_, a_, SF, 0, mods="offen sc1")
            k.pop()
            k.label(skip)

        def check():
            skip, again = k.newlabel(), k.newlabel()
            k.s_cmp_lg_u32(sW, pw)
            k.s_cbranch_scc1(skip)
            k.push(If(lambda sc: sc["w"] == pw))
            for d_ in dsts:
                k.v_xor_b32(d_, EPOCH, d_)
            for d_ in dsts[1:]:
                k.v_or_b32(dsts[0], dsts[0], d_)
            k.v_cmp_ne_u32("vcc", 0, dsts[0])
            k.s_cbranch_vccnz(again)
            k.pop()
            k.label(skip)
            k.cold()
            k.label(again)
            srd(k, SF, WS, FSZ, WS_FLG)
            self.poll(addrs, dsts, SF, lambda d_: k.v_cmp_ne_u32("vcc", EPOCH, d_))
            k.s_branch(skip)
            k.pop()
        return issue, check

    def prio(self, on):
        m = self.opt("prio", 0)
        if not m:
            return
        k = self.k
        if not on:
            k.s_setprio(0)
            return
        skip = k.newlabel()
        if m == 1:
            k.s_cmp_lt_u32(sW, 4)
        else:
            k.s_cmp_ge_u32(sW, 4)
        k.s_cbranch_scc1(skip)
        k.s_setprio(1)
        k.label(skip)

    def get_epoch(self, va, vb):
        k = self.k
        have, slow = k.newlabel(), k.newlabel()
        k.v_cmp_eq_u32("vcc", 0, vb)
        k.s_cbranch_vccnz(slow)
        k.label(have)
        k.v_readfirstlane_b32(EPOCH, vb)
        k.cold()
        k.label(slow)
        k.v_mov_b32(va, 0)
        self.poll([va], [vb], SDBG, lambda d_: k.v_cmp_eq_u32("vcc", 0, d_))
        k.s_branch(have)
        k.pop()

    def p01(self):
        k = self.k
        LA = self.opt("k1_la", 12)
        LEAD = self.opt("k1_lead", 3)
        XD = 2 * LEAD + 1
        NQ, NW, ND = 2, 8, 2
        KS, CH = 8 * NQ, 16 * NQ
        if self.opt("st", 0):
            k.s_memrealtime(s(82, 2))
        k.s_load_dwordx4(s(4, 4), s(0, 2), KA_K)
        k.s_load_dwordx2(s(8, 2), s(0, 2), KA_WQ)
        k.s_load_dwordx4(s(56, 4), s(0, 2), KA_DBG)
        k.s_load_dwordx4(s(60, 4), s(0, 2), KA_C)
        k.s_load_dwordx2(s(64, 2), s(0, 2), KA_X)
        SWQ, SK, SV, SXH, SPT, SO = s(12, 4), s(16, 4), s(20, 4), s(24, 4), s(28, 4), s(32, 4)
        sHead, sRb, sWb = s(37), s(38), s(39)
        SJ = SideJobs(k, sW, NW, 60, 228, 8 * SLOT, WS, extra=(v(10), v(11)), sc1=True)
        k.s_load_dwordx2(SJ.PW[0:2], s(0, 2), KA_WO)
        k.s_load_dwordx2(SJ.PW[2:4], s(0, 2), KA_WD)
        k.s_load_dwordx4(SJ.PG, s(0, 2), KA_C)
        PGU = s(28, 4)
        sT = [s(40 + i) for i in range(8)]
        sC, sTh, sKV, sWo, sXo, sXb = s(48), s(49), s(50), s(51), s(52), s(53)
        sOo = s(54)
        t = v(0)
        lane = v(1)
        l15, l4, tmpa, tmpb, x0, x1 = [v(196 + i) for i in range(6)]
        voW = [v(2), v(3)]
        voK = [v(4), v(5)]
        voV = [v(6), v(7)]
        vl16, aPT = v(8), v(9)
        lsum = [v(12 + i) for i in range(NQ)]
        ts = [v(14 + i) for i in range(NQ)]
        AT = [v(16 + i) for i in range(8)]
        AK = [v(24 + i) for i in range(8)]
        tall = v(32)
        NM = v(36, 8)
        TE = [v(44 + i) for i in range(8)]
        QB = v(52, 32)
        SB = [v(84, 16), v(100, 16)]
        PB = [v(116, 8), v(124, 8)]
        XF = [v(52 + 8 * i, 8) for i in range(XD)]
        HB = [v(116, 8), v(124, 8)]
        PR = [v(228, 8), v(236, 8)]
        HT = [v(244 + i) for i in range(8)]
        ACC = v(132, 64)
        acc = lambda tt, qt: ACC[(tt * NQ + qt) * 4:(tt * NQ + qt) * 4 + 4]
        NWF = 8
        WF = [v(196 + 4 * i, 4) for i in range(NWF)]
        NKF = NVF = 4
        KF = WF[:4]
        VF = WF[4:]

        k.v_and_b32(lane, 63, t)
        k.v_lshrrev_b32(tmpa, 6, t)
        k.v_readfirstlane_b32(sW, tmpa)
        B = 52
        r, c, row, vo, a0, a1 = [v(B + i) for i in range(6)]
        X = [v(B + 8 + 4 * i, 4) for i in range(5)]
        F = v(B + 28, 40)
        sm, tm = v(B + 6), v(B + 7)
        SX, SH, SC_, SWM, SM = s(68, 4), s(72, 4), s(68, 4), s(72, 4), s(76, 4)
        cbk = s(66)
        modw, p0j = k.newlabel(), k.newlabel()
        k.s_cmp_ge_u32(sW, 2)
        k.s_cbranch_scc1(modw)
        k.push(If(lambda sc: sc["role"] == "ln"))
        k.v_and_b32(r, 3, lane)
        k.v_lshrrev_b32(c, 2, lane)
        k.s_lshl_b32(s(3), s(2), 1)
        k.s_add_u32(s(3), s(3), sW)
        k.s_lshl_b32(s(3), s(3), 2)
        k.v_add_u32(row, s(3), r)
        k.v_mul_u32_u24(vo, 1280, row)
        k.v_lshl_add_u32(vo, c, 4, vo)
        k.waitcnt(lgkm=0)
        srd(k, SX, s(64, 2), SZ_H1)
        for i in range(5):
            k.buffer_load_dwordx4(X[i], vo, SX, 0, mods=f"offen offset:{i * 256}")
        srd(k, SH, s(58, 2), SZ_H1, WS_H1)
        k.v_lshrrev_b32(a0, 4, row)
        k.v_mul_u32_u24(a0, 20, a0)
        k.v_lshrrev_b32(a1, 2, c)
        k.v_add_lshl_u32(a0, a0, a1, 10)
        k.v_and_b32(a1, 3, c)
        k.v_lshl_add_u32(a0, a1, 8, a0)
        k.v_and_b32(a1, 15, row)
        k.v_lshl_add_u32(a0, a1, 4, a0)
        k.s_branch(p0j)
        k.pop()
        k.label(modw)
        k.push(If(lambda sc: sc["role"] != "ln"))
        NR = 4
        MW = [v(B + 8 + 4 * i, 4) for i in range(NR)]
        MC = [v(B + 36 + i) for i in range(NR)]
        ME = [v(B + 44 + i) for i in range(NR)]
        macc = [v(B + 52 + j) for j in range(8)]
        mtmp = [v(B + 60 + j) for j in range(8)]
        tp, chunk, rg, voffw, voffc = r, c, row, vo, a0
        k.s_lshr_b32(cbk, s(2), 2)
        k.s_and_b32(s(3), s(2), 3)
        k.s_mul_i32(s(3), s(3), 160)
        k.v_subrev_u32(tp, 128, t)
        k.v_and_b32(chunk, 7, tp)
        k.v_lshrrev_b32(rg, 3, tp)
        k.v_add_u32(voffc, s(3), rg)
        k.v_mul_u32_u24(voffw, 7680, voffc)
        k.v_lshl_add_u32(voffw, chunk, 4, voffw)
        k.s_lshl_b32(s(67), cbk, 7)
        k.v_add_u32(voffw, s(67), voffw)
        k.v_lshlrev_b32(voffc, 1, voffc)
        k.waitcnt(lgkm=0)
        srd(k, SWM, s(62, 2), 640 * 7680)
        k.s_cmp_lt_u32(s(2), 80)
        k.s_cselect_b32(SWM[2], SWM[2], 0)
        srd(k, SC_, s(60, 2), 1280)
        for i in range(NR):
            k.s_mov_b32(s(67), hex(i * 48 * 7680))
            k.buffer_load_dwordx4(MW[i], voffw, SWM, s(67), mods="offen")
        for i in range(NR):
            k.buffer_load_ushort(MC[i], voffc, SC_, 0, mods=f"offen offset:{i * 96}")
        k.pop()
        k.label(p0j)
        k.s_add_u32(SM[0], s(58), hex(WS_MP))
        k.s_addc_u32(SM[1], s(59), 0)
        k.s_mov_b32(SM[3], "0x20000")
        k.s_cmp_lt_u32(s(2), 80)
        k.s_cselect_b32(SM[2], hex(SZ_MP), 0)

        k.s_mov_b32(WS[0], s(58))
        k.s_mov_b32(WS[1], s(59))
        k.s_mov_b32(DBGP[0], s(56))
        k.s_mov_b32(DBGP[1], s(57))
        k.s_mov_b32(SDBG[2], 256)
        k.s_mov_b32(SDBG[3], "0x20000")
        k.s_mov_b32(EPOCH, 0)
        noep = k.newlabel()
        k.s_or_b32(s(3), s(2), sW)
        k.s_cmp_lg_u32(s(3), 0)
        k.s_cbranch_scc1(noep)
        k.push(If(lambda sc: sc["w0"]))
        k.s_memrealtime(s(100, 2))
        k.v_mov_b32(tmpb, 0)
        k.waitcnt(lgkm=0)
        k.s_or_b32(s(3), s(100), 1)
        k.v_mov_b32(tmpa, s(3))
        k.s_mov_b64("exec", 1)
        k.buffer_store_dword(tmpa, tmpb, SDBG, 0, mods="offen sc1")
        k.s_mov_b64("exec", -1)
        k.pop()
        k.label(noep)
        k.s_and_b32(sT[0], s(2), 7)
        k.s_lshr_b32(sT[1], s(2), 3)
        k.s_and_b32(sT[2], sT[1], 3)
        k.s_lshl_b32(sHead, sT[0], 2)
        k.s_add_u32(sHead, sHead, sT[2])
        k.s_lshr_b32(sRb, sT[1], 2)
        k.v_and_b32(l15, 15, lane)
        k.v_lshrrev_b32(l4, 4, lane)
        k.v_lshlrev_b32(vl16, 4, lane)
        k.s_lshl_b32(sWb, sW, 11)
        k.s_lshl_b32(sT[0], sRb, 3)
        k.s_add_u32(sT[0], sT[0], sW)
        k.s_mul_i32(sXb, sT[0], 2 * 20 * 1024)
        k.s_lshl_b32(sT[1], sW, 3)
        k.v_add_u32(tmpb, sT[1], l4)
        for par in range(2):
            k.v_add_u32(tmpa, 4 * par, l4)
            k.v_lshlrev_b32(tmpa, 1, tmpa)
            k.v_xor_b32(tmpa, l15, tmpa)
            k.v_lshlrev_b32(tmpa, 4, tmpa)
            k.v_lshl_add_u32(voV[par], tmpb, 8, tmpa)
        for i in range(2):
            k.v_add_u32(tmpa, 4 * i, tmpb)
            k.v_and_b32(tmpa, 15, tmpa)
            k.v_xor_b32(tmpa, l15, tmpa)
            k.v_lshlrev_b32(tmpa, 4, tmpa)
            k.v_lshl_add_u32(voK[i], tmpb, 8, tmpa)
        k.s_and_b32(sT[1], sW, 1)
        k.s_lshl_b32(sT[1], sT[1], 2)
        k.v_add_u32(tmpa, sT[1], l4)
        k.v_lshlrev_b32(tmpa, 1, tmpa)
        k.v_xor_b32(tmpa, l15, tmpa)
        k.v_lshlrev_b32(tmpa, 4, tmpa)
        k.v_lshl_add_u32(voW[0], tmpb, 13, tmpa)
        srd(k, SXH, WS, SZ_H1, WS_H1)
        srd(k, SPT, WS, SZ_MP, WS_MP)
        srd(k, SWQ, s(8, 2), 640 * 8192)
        k.s_lshl_b32(sWo, sHead, 8)
        srd(k, SK, s(4, 2), 32 * 2048 * 256)
        srd(k, SV, s(6, 2), 32 * 2048 * 256)
        srd(k, SO, WS, SZ_O, WS_O)
        k.s_lshl_b32(sKV, sHead, 19)
        k.s_add_u32(sKV, sKV, hex(1536 * 256))
        k.s_mov_b32(sC, f32hex(LOG2E / 128 ** 0.5))
        BIAS = self.opt("bias", 0)
        k.s_mov_b32(sTh, f32hex(THRESH * 2.0 ** -BIAS))
        ATV0 = voW[1]
        k.v_bfe_u32(tmpa, lane, 2, 2)
        k.v_lshl_add_u32(x0, l4, 2, tmpa)
        k.v_and_b32(x1, 7, x0)
        k.v_lshlrev_b32(x1, 5, x1)
        k.v_lshl_add_u32(x1, x0, 8, x1)
        k.v_and_b32(tmpb, 3, lane)
        k.v_lshl_add_u32(ATV0, tmpb, 3, x1)
        k.v_add_u32(ATV0, 4 * SLOT, ATV0)
        k.v_lshl_add_u32(x0, l4, 3, tmpa)
        k.v_and_b32(x1, 1, l4)
        k.v_lshl_add_u32(x1, x1, 2, tmpa)
        k.v_lshlrev_b32(x1, 5, x1)
        k.v_lshl_add_u32(x1, x0, 8, x1)
        k.v_lshl_add_u32(AT[0], tmpb, 3, x1)
        for tt in range(1, 8):
            k.v_xor_b32(AT[tt], tt << 5, AT[0])
        k.v_lshrrev_b32(tmpa, 1, l4)
        k.v_xor_b32(tmpa, l15, tmpa)
        k.v_lshlrev_b32(tmpa, 4, tmpa)
        k.v_lshl_add_u32(tmpa, l15, 8, tmpa)
        k.v_and_b32(tmpb, 1, l4)
        k.v_lshl_add_u32(AK[0], tmpb, 3, tmpa)
        for x in range(1, 8):
            k.v_xor_b32(AK[x], x << 5, AK[0])
        k.v_lshlrev_b32(aPT, 5, l4)
        k.v_add_u32(aPT, hex(PT_LDS), aPT)
        k.s_lshl_b32(sT[0], sRb, 2)
        k.s_lshr_b32(sT[1], sW, 1)
        k.s_add_u32(sT[0], sT[0], sT[1])
        k.s_lshl_b32(sOo, sT[0], 19)
        k.s_and_b32(sT[1], sW, 1)
        k.s_lshl_b32(sT[1], sT[1], 11)
        k.s_add_u32(sOo, sOo, sT[1])
        k.s_lshl_b32(sT[1], sHead, 14)
        k.s_add_u32(sOo, sOo, sT[1])

        modc, p0e = k.newlabel(), k.newlabel()
        k.s_cmp_ge_u32(sW, 2)
        k.s_cbranch_scc1(modc)
        k.push(If(lambda sc: sc["role"] == "ln"))
        for i in range(5):
            for j in range(4):
                unpack_bf16(k, F[8 * i + 2 * j], F[8 * i + 2 * j + 1], X[i][j])
        SP = v(B + 6, 2)

        def reduce():
            k.v_add_f32(sm, sm, tm)
            dpp_add(k, [sm], "row_ror:4")
            dpp_add(k, [sm], "row_ror:8")
            swap_add(k, [sm], [tm], 16)
            swap_add(k, [sm], [tm], 32)
        k.v_pk_add_f32(SP, F[0:2], F[2:4])
        for j in range(4, 40, 2):
            k.v_pk_add_f32(SP, SP, F[j:j + 2])
        reduce()
        k.v_mul_f32(sm, f32hex(-1.0 / 640), sm)
        k.v_mov_b32(tm, sm)
        srd(k, SX, WS, 8192, WS_MU)
        k.v_lshlrev_b32(a1, 2, row)
        k.s_mov_b64("exec", 15)
        k.buffer_store_dword(sm, a1, SX, 0, mods="offen sc1", tag="P0")
        k.s_mov_b64("exec", -1)
        for j in range(0, 40, 2):
            k.v_pk_add_f32(F[j:j + 2], F[j:j + 2], SP)
        k.v_pk_mul_f32(SP, F[0:2], F[0:2])
        for j in range(2, 40, 2):
            k.v_pk_fma_f32(SP, F[j:j + 2], F[j:j + 2], SP)
        reduce()
        k.v_mov_b32(tm, f32hex(1e-5))
        k.v_fmac_f32(tm, f32hex(1.0 / 640), sm)
        k.v_rsq_f32(tm, tm)
        k.v_mov_b32(sm, tm)
        for i in range(5):
            for j in range(0, 8, 2):
                k.v_pk_mul_f32(F[8 * i + j:8 * i + j + 2], F[8 * i + j:8 * i + j + 2], SP)
            for j in range(4):
                k.v_cvt_pk_f16_f32(X[i][j], F[8 * i + 2 * j], F[8 * i + 2 * j + 1])
            k.s_movk_i32(s(3), i * 4096)
            k.buffer_store_dwordx4(X[i], a0, SH, s(3), mods="offen sc1", tag="P0")
        k.s_branch(p0e)
        k.pop()
        k.label(modc)
        k.push(If(lambda sc: sc["role"] != "ln"))
        if 0:
            early = k.newlabel()
            k.s_cmp_lt_u32(cbk, 80)
            k.s_cbranch_scc1(early)
            k.push(If(lambda sc: not sc["odd"]))
            k.s_sleep(0 * 8)
            modloads()
            k.pop()
            k.label(early)
        k.s_mov_b32(s(67), f32hex(-LOG2E))
        for i in range(NR):
            k.v_lshlrev_b32(MC[i], 16, MC[i])
        for i in range(NR):
            k.v_mul_f32(ME[i], s(67), MC[i])
        for i in range(NR):
            k.v_exp_f32(ME[i], ME[i])
        for i in range(NR):
            k.v_add_f32(ME[i], 1.0, ME[i])
        for i in range(NR):
            k.v_rcp_f32(ME[i], ME[i])
        for i in range(NR):
            k.v_mul_f32(MC[i], MC[i], ME[i])
        for i in range(NR):
            k.v_cvt_pk_bf16_f32(MC[i], MC[i], MC[i])
        for i in range(NR):
            k.v_lshlrev_b32(MC[i], 16, MC[i])
        nosc = k.newlabel()
        k.s_cmp_ge_u32(s(2), 4)
        k.s_cbranch_scc1(nosc)
        srd(k, SC_, WS, 1280, WS_SC)
        k.v_cmp_eq_u32("vcc", 0, chunk)
        k.s_and_saveexec_b64(s(100, 2), "vcc")
        for i in range(3):
            k.buffer_store_short_d16_hi(MC[i], voffc, SC_, 0, mods=f"offen offset:{i * 96} sc1")
        k.v_cmp_gt_u32("vcc", 16, rg)
        k.s_and_b64("exec", "exec", "vcc")
        k.buffer_store_short_d16_hi(MC[3], voffc, SC_, 0, mods="offen offset:288 sc1")
        k.s_mov_b64("exec", -1)
        k.waitcnt(vm=0)
        k.label(nosc)
        k.v_cmp_gt_u32("vcc", 16, rg)
        k.v_cndmask_b32(MC[3], 0, MC[3], "vcc")
        for i in range(NR):
            for j in range(4):
                unpack_bf16(k, mtmp[2 * j], mtmp[2 * j + 1], MW[i][j])
            for j in range(8):
                if i == 0:
                    k.v_mul_f32(macc[j], MC[i], mtmp[j])
                else:
                    k.v_fmac_f32(macc[j], MC[i], mtmp[j])
        if self.opt("st", 0):
            k.s_memrealtime(s(70, 2))
        dpp_add(k, macc, "row_ror:8")
        swap_add(k, macc, mtmp, 16)
        swap_add(k, macc, mtmp, 32)
        k.s_sub_u32(s(3), sW, 2)
        k.s_lshl_b32(s(3), s(3), 8)
        k.s_add_u32(s(3), s(3), hex(P0_LDS + 512))
        k.v_lshlrev_b32(a1, 5, chunk)
        k.v_add_u32(a1, s(3), a1)
        k.ds_write_b128(a1, v(B + 52, 4))
        k.ds_write_b128(a1, v(B + 56, 4), mods="offset:16")
        k.waitcnt(lgkm=0)
        k.pop()
        k.label(p0e)

        wslot = lambda c_: (c_ if c_ < 9 else 0) * SLOT
        kslot = lambda i: ((i + 1) % 4) * SLOT
        vslot = lambda i: (4 + i % 4) * SLOT

        def dma1(srd_, vo_, sbase, add, slot_addr, tag, j):
            k.s_add_u32(sT[3], sbase, hex(add))
            k.s_add_u32("m0", sWb, hex(slot_addr))
            k.buffer_load_dwordx4(vo_, srd_, sT[3], mods=f"offen offset:{1024 * j} lds" if j else "offen lds", tag=tag)

        def dmaW(c_, j):
            dma1(SWQ, voW[0], sWo, c_ * 64 * 8192 + j * (32768 - 1024), wslot(c_), f"W{c_}", j)

        def dmaK(i, j):
            dma1(SK, voK[j], sKV, i * 64 * 256, kslot(i), f"K{i}", j)

        def dmaV(i, j):
            dma1(SV, voV[j & 1], sKV, i * 64 * 256, vslot(i), f"V{i}", j)

        def loadX(ks, qt):
            k.s_add_u32(sXo, sXb, hex((qt * 20 + ks) * 1024))
            k.buffer_load_dwordx4(XF[ks % XD][4 * qt:4 * qt + 4], vl16, SXH, sXo, mods="offen sc1")

        vEp = v(33)
        INITW = self.opt("initw", LEAD)
        k.v_mov_b32(x0, 0)
        k.buffer_load_dword(vEp, x0, SDBG, 0, mods="offen sc1", tag="P0")

        def wdma(shift=0):
            vw = voW[0]
            if shift:
                vw = x1
                k.v_subrev_u32(vw, hex(shift * 8 * 8192), voW[0])
            for c_ in range(INITW):
                for j in range(ND):
                    k.s_add_u32(sT[3], sWo, hex(c_ * 64 * 8192 + j * (32768 - 1024)))
                    k.s_add_u32("m0", sWb, hex((wslot(c_) - shift * 2048) & 0xffffffff))
                    k.buffer_load_dwordx4(vw, SWQ, sT[3], mods=f"offen offset:{1024 * j} lds" if j else "offen lds",
                                          tag=f"W{c_}")
        w5, wj, wl = k.newlabel(), k.newlabel(), k.newlabel()
        k.s_barrier()
        k.s_cmp_eq_u32(sW, 2)
        k.s_cbranch_scc1(w5)
        k.push(If(lambda sc: sc["w"] != 2))
        k.s_cmp_ge_u32(sW, 2)
        k.s_cbranch_scc1(wl)
        k.push(If(lambda sc: sc["role"] == "ln"))
        if self.opt("st", 0):
            k.s_memrealtime(s(70, 2))
        k.need("P0")
        if self.opt("st", 0):
            k.s_memrealtime(s(74, 2))
        self.get_epoch(tmpa, vEp)
        k.s_lshr_b32(sT[4], s(2), 5)
        k.s_and_b32(sT[6], s(2), 31)
        k.s_lshl_b32(sT[6], sT[6], 1)
        k.s_add_u32(sT[6], sT[6], sW)
        self.flag_off(sT[5], F_X, sT[4], sT[6])
        self.set_flag(sT[5], tmpa, tmpb)
        k.s_cmp_eq_u32(sW, 0)
        k.s_cbranch_scc1(wj)
        k.pop()
        k.label(wl)
        k.push(If(lambda sc: sc["w"] != 0))
        wdma()
        WT0 = self.opt("wt0", 0)
        wk = k.newlabel() if WT0 else wj
        k.s_and_b32(s(3), sW, 5)
        k.s_cmp_lg_u32(s(3), 4)
        k.s_cbranch_scc1(wk)
        k.push(If(lambda sc: sc["w"] == 4))
        wdma(4)
        k.pop()
        if WT0:
            k.label(wk)
            k.s_cmp_lt_u32(sW, 3)
            k.s_cbranch_scc1(wj)
            k.push(If(lambda sc: sc["w"] >= 3))
            k.s_sub_u32(s(55), sW, 3)
            SW0 = SideJobs(k, sW, 5, 60, 132, 8 * SLOT, WS, sc1=True)
            for f in SW0.wt_setup(lane, jlim=1280, wv=s(55)):
                f()
            for i in range(4):
                SW0.wt_dma(i)()
            for i in range(4):
                SW0.wt_read(i, first=(i == 0))()
            for i in range(4):
                SW0.wt_store(i)()
            k.pop()
        k.s_branch(wj)
        k.pop()
        k.pop()
        k.label(w5)
        k.push(If(lambda sc: sc["w5"]))
        col = a0
        k.v_lshlrev_b32(col, 2, lane)
        k.v_add_u32(a1, hex(P0_LDS + 512), col)
        for w in range(6):
            k.ds_read_b32(mtmp[w], a1, mods=f"offset:{w * 256}")
        k.v_add_f32(mtmp[0], mtmp[0], mtmp[1])
        k.v_add_f32(mtmp[2], mtmp[2], mtmp[3])
        k.v_add_f32(mtmp[4], mtmp[4], mtmp[5])
        k.v_add_f32(mtmp[0], mtmp[0], mtmp[2])
        k.v_add_f32(mtmp[0], mtmp[0], mtmp[4])
        k.s_and_b32(s(3), s(2), 3)
        k.s_mul_i32(s(3), s(3), 5120)
        k.s_lshl_b32(s(67), cbk, 8)
        k.s_add_u32(s(3), s(3), s(67))
        k.buffer_store_dword(mtmp[0], col, SM, s(3), mods="offen sc1", tag="P0")
        self.get_epoch(tmpa, vEp)
        k.need("P0")
        if self.opt("st", 0):
            k.s_memrealtime(s(74, 2))
        k.s_mov_b32(sT[4], 0)
        self.flag_off(sT[5], F_M, sT[4], s(2))
        k.s_cmp_lt_u32(s(2), 80)
        k.s_cselect_b32(sT[5], sT[5], "0x7fff0000")
        self.set_flag(sT[5], tmpa, tmpb)
        k.pop()
        k.label(wj)

        def setup0():
            k.v_lshlrev_b32(x0, FSH, lane)
            k.s_lshl_b32(sT[5], sRb, 6 + FSH)
            k.v_add_u32(l15, sT[5], x0)
            k.v_add_u32(x0, hex(F_M * FPH), x0)
            k.v_and_b32(x1, 15, lane)
            k.v_lshlrev_b32(x1, FSH, x1)
            k.v_add_u32(x1, hex(F_M * FPH + (64 << FSH)), x1)
        self.wait(setup0, [x0, x1, l15], [tmpa, tmpb, l4])
        for sr in (82, 70, 74):
            self.stamp(sr)
        self.stamp()
        PTR = v(204, 16)
        nopt = k.newlabel()
        k.s_cmp_ge_u32(sW, 5)
        k.s_cbranch_scc1(nopt)
        k.push(If(lambda sc: sc["w"] < 5))
        k.v_lshlrev_b32(tmpa, 4, t)
        for q in range(4):
            k.s_movk_i32(s(3), q * 5120)
            k.buffer_load_dwordx4(PTR[4 * q:4 * q + 4], tmpa, SPT, s(3), mods="offen sc1")
        k.pop()
        k.label(nopt)
        k.s_load_dwordx4(PGU, s(0, 2), KA_WG)
        late = []
        for ks in range(2 * LEAD):
            for qt in range(NQ):
                if self.opt("hd", 1) and ks >= 2:
                    late.append(lambda ks=ks, qt=qt: loadX(ks, qt))
                else:
                    loadX(ks, qt)
        k.waitcnt(lgkm=0)
        nopt = k.newlabel()
        k.s_cmp_ge_u32(sW, 5)
        k.s_cbranch_scc1(nopt)
        k.push(If(lambda sc: sc["w"] < 5))
        k.v_cmp_lt_u32("vcc", 159, t)
        k.v_subrev_u32(tmpb, 160, t)
        k.v_cndmask_b32(tmpb, t, tmpb, "vcc")
        k.v_cndmask_b32(x0, 0, 1.0, "vcc")
        k.v_cndmask_b32(x1, 16, 0, "vcc")
        k.v_lshrrev_b32(tmpa, 1, tmpb)
        k.v_lshl_add_u32(x1, tmpa, 5, x1)
        k.v_and_b32(tmpa, 1, tmpb)
        k.v_lshl_add_u32(x1, tmpa, 3, x1)
        k.v_add_u32(x1, hex(PT_LDS), x1)
        for e in range(0, 4, 2):
            k.v_pk_add_f32(PTR[e:e + 2], PTR[e:e + 2], PTR[4 + e:6 + e])
            k.v_pk_add_f32(PTR[8 + e:10 + e], PTR[8 + e:10 + e], PTR[12 + e:14 + e])
            k.v_pk_add_f32(PTR[e:e + 2], PTR[e:e + 2], PTR[8 + e:10 + e])
        for rep in range(2):
            for e in range(0, 4, 2):
                k.v_cvt_pk_bf16_f32(PTR[4 + e], PTR[e], PTR[e + 1])
                unpack_bf16(k, PTR[e], PTR[e + 1], PTR[4 + e])
            if rep == 0:
                for e in range(4):
                    k.v_add_f32(PTR[e], PTR[e], x0)
        k.v_cvt_pk_f16_f32(PTR[4], PTR[0], PTR[1])
        k.v_cvt_pk_f16_f32(PTR[5], PTR[2], PTR[3])
        k.ds_write_b64(x1, PTR[4:6])
        k.waitcnt(lgkm=0)
        k.pop()
        k.label(nopt)

        def sync(tags):
            def f():
                k.need(*tags)
                k.s_barrier()
                if tags[0] in ("W0", "W4", "K0", "K1", "K3", "K5", "K7"):
                    self.stamp2()
            return f

        S = Sched()
        atreg = [0]

        def at_shift(newreg):
            def f():
                d = (newreg - atreg[0]) * 4 * SLOT
                atreg[0] = newreg
                for tt in range(8):
                    if d > 0:
                        k.v_add_u32(AT[tt], hex(d), AT[tt])
                    else:
                        k.v_subrev_u32(AT[tt], hex(-d), AT[tt])
            return f

        def wread(G):
            ks, tt = divmod(G, 8)
            c_, sidx = divmod(ks, 2)
            reg, off = divmod(wslot(c_), 4 * SLOT)
            dst = WF[G % NWF]

            def f():
                assert atreg[0] == reg
                for rd in range(2):
                    k.ds_read_b64_tr_b16(dst[2 * rd:2 * rd + 2], AT[tt], mods=f"offset:{off + sidx * 8192 + rd * 1024}")
            return f

        def pread(ks):
            def f():
                k.ds_read_b128(PR[ks % 2][0:4], aPT, mods=f"offset:{ks * 128}")
                k.ds_read_b128(PR[ks % 2][4:8], aPT, mods=f"offset:{ks * 128 + 16}")
            return f

        def modulate(ks):
            fs = []
            P_ = PR[ks % 2]
            for qt in range(NQ):
                X_, H_ = XF[ks % XD][4 * qt:4 * qt + 4], HB[ks % 2][4 * qt:4 * qt + 4]
                for j in range(4):
                    for hf in range(2):
                        fs.append(lambda j=j, hf=hf, X_=X_: k.v_fma_mix_f32(
                            HT[2 * j + hf], X_[j], P_[j], P_[4 + j], mods=f"op_sel:[{hf},{hf},{hf}] op_sel_hi:[1,1,1]"))
                for j in range(4):
                    fs.append(lambda j=j, H_=H_: k.v_cvt_pk_bf16_f32(H_[j], HT[2 * j], HT[2 * j + 1]))
            return fs

        for G in range(160):
            ks, tt = divmod(G, 8)
            for qt in range(NQ):
                S.add_mfma(lambda G=G, ks=ks, tt=tt, qt=qt: k.op(
                    MF, acc(tt, qt), WF[G % NWF], HB[ks % 2][4 * qt:4 * qt + 4], 0 if ks == 0 else acc(tt, qt)))
            S.at(max(NQ * G - LA, NQ * (G - NWF) + NQ - 1), wread(G), 1)
        for c_, reg in ((4, 1), (8, 2), (9, 0)):
            S.at(CH * c_ - LA, at_shift(reg), 0.5)
        S.at(-1, sync(["W0"]), 0)
        for i, f in enumerate(late):
            S.at(-1 if i < 4 else i - 4, f, 1.5)
        S.at(-1, pread(0), 0.6)
        for f in modulate(0):
            S.at(-1, f, 2)
        S.at(-1, pread(1), 3)
        for ks in range(1, 20):
            S.spread(modulate(ks), KS * (ks - 1) + 2, KS * ks - 1)
            if ks + 1 < 20:
                S.at(KS * (ks - 1) + KS // 2, pread(ks + 1), 3)
        for c_ in range(1, 10):
            if c_ % 2 == 1 and c_ > 1:
                continue
            tags = [f"W{c_}"] + ([f"W{c_ + 1}"] if c_ > 1 else [])
            S.at(CH * c_ - LA, sync(tags), 0)
        for c_ in range(0, 10 - LEAD):
            cc = c_ + LEAD
            for j in range(ND):
                if cc >= INITW:
                    S.at(CH * c_ + 2 + 16 * j, lambda cc=cc, j=j: dmaW(cc, j), 3)
            for h in range(2):
                for qt in range(NQ):
                    S.at(CH * c_ + KS * h + 6 + 6 * qt, lambda ks=2 * cc + h, qt=qt: loadX(ks, qt), 3)
        kv = []
        for fn, i in ((dmaK, 0), (dmaK, 1), (dmaV, 0), (dmaK, 2), (dmaV, 1), (dmaV, 2)):
            kv += [lambda fn=fn, i=i, j=j: fn(i, j) for j in range(ND)]
        p0 = CH * (10 - LEAD)
        for i, f in enumerate(kv):
            S.at(max(p0 + 2 + 6 * i, (CH * 8 - LA + 1) if i >= 5 * ND else 0), f, 3)

        A0 = 160 * NQ
        kuse, vuse = {}, {}
        kcnt, vcnt = [0], [0]

        def add_Sg(step, kt, ds):
            idx = kcnt[0]
            kcnt[0] += 1
            dst = KF[idx % NKF]
            base = kslot(step // 2) + (step % 2) * 8192 + kt * 4096
            n0 = len(S.mf)
            for qt in range(NQ):
                D = SB[step % 2][(kt * NQ + qt) * 4:(kt * NQ + qt) * 4 + 4]
                C = D if ds else (0 if step < 2 else NM[4 * qt:4 * qt + 4])
                S.add_mfma(lambda D=D, C=C, qt=qt: k.op(MF, D, dst, QB[(ds * NQ + qt) * 4:(ds * NQ + qt) * 4 + 4], C))
            kuse[idx] = n0 + NQ - 1

            def rd():
                for hi in range(2):
                    k.ds_read_b64(dst[2 * hi:2 * hi + 2], AK[2 * ds + hi], mods=f"offset:{base}")
            S.at(max(n0 - LA, kuse.get(idx - NKF, -1)), rd, 1)

        def add_Pg(step, dt):
            idx = vcnt[0]
            vcnt[0] += 1
            dst = VF[idx % NVF]
            base = vslot(step // 2) - 4 * SLOT + (step % 2) * 8192
            n0 = len(S.mf)
            for qt in range(NQ):
                O_ = acc(dt, qt)
                S.add_mfma(lambda O_=O_, qt=qt: k.op(MF, O_, dst, PB[step % 2][4 * qt:4 * qt + 4], 0 if step == 0 else O_))
            vuse[idx] = n0 + NQ - 1

            def rd():
                assert atreg[0] == 1
                for r2 in range(2):
                    k.ds_read_b64_tr_b16(dst[2 * r2:2 * r2 + 2], AT[dt], mods=f"offset:{base + r2 * 4096}")
            S.at(max(n0 - LA, vuse.get(idx - NVF, -1)), rd, 1)

        def softmax(step):
            Sx, Px = SB[step % 2], PB[step % 2]
            A, B_, C = [], [], []
            n = 0
            for qt in range(NQ):
                for kt in range(2):
                    for h in range(2):
                        i0 = (kt * NQ + qt) * 4 + 2 * h
                        e0, e1 = TE[(2 * n) % 8], TE[(2 * n + 1) % 8]
                        n += 1
                        a_ = []
                        s0, s1 = Sx[i0], Sx[i0 + 1]
                        if step < 2:
                            a_ = [lambda e0=e0, s0=s0, qt=qt: k.v_add_f32(e0, s0, NM[4 * qt]),
                                  lambda e1=e1, s1=s1, qt=qt: k.v_add_f32(e1, s1, NM[4 * qt])]
                            s0, s1 = e0, e1
                        A.append(a_)
                        B_.append([lambda e0=e0, s0=s0: k.v_exp_f32(e0, s0), lambda e1=e1, s1=s1: k.v_exp_f32(e1, s1)])
                        c_ = []
                        if kt == 0 and h == 0:
                            c_.append(lambda e0=e0, e1=e1, qt=qt: k.v_add_f32(ts[qt], e0, e1))
                        else:
                            c_.append(lambda e0=e0, e1=e1: k.v_add_f32(tall, e0, e1))
                            c_.append(lambda qt=qt: k.v_add_f32(ts[qt], ts[qt], tall))
                        c_.append(lambda e0=e0, e1=e1, qt=qt, kt=kt, h=h: k.v_cvt_pk_bf16_f32(Px[4 * qt + 2 * kt + h], e0, e1))
                        C.append(c_)
            fs = []
            NP = 4 * NQ
            for stp in range(NP + 2):
                if stp < NP:
                    fs += A[stp]
                if 1 <= stp < NP + 1:
                    fs += B_[stp - 1]
                if stp >= 2:
                    fs += C[stp - 2]
            return fs

        def rowmax(step, dst, tmp):
            Sx = SB[step % 2]
            fs = []
            for qt in range(NQ):
                v8 = [Sx[(kt * NQ + qt) * 4 + e] for kt in range(2) for e in range(4)]
                fs.append(lambda qt=qt, v8=v8: k.v_max3_f32(dst[qt], v8[0], v8[1], v8[2]))
                fs.append(lambda qt=qt, v8=v8: k.v_max3_f32(tmp[qt], v8[3], v8[4], v8[5]))
                fs.append(lambda qt=qt, v8=v8: k.v_max3_f32(dst[qt], dst[qt], v8[6], v8[7]))
                fs.append(lambda qt=qt: k.v_max_f32(dst[qt], dst[qt], tmp[qt]))
            for op in ("v_permlane16_swap_b32", "v_permlane32_swap_b32"):
                for qt in range(NQ):
                    fs.append(lambda qt=qt: k.v_mov_b32(tmp[qt], dst[qt]))
                for qt in range(NQ):
                    fs.append(lambda qt=qt, op=op: k.op(op, dst[qt], tmp[qt]))
                for qt in range(NQ):
                    fs.append(lambda qt=qt: k.v_max_f32(dst[qt], dst[qt], tmp[qt]))
            return fs

        def check(step):
            cold = f"L_attn_cold{step}"
            back = f"L_attn_back{step}"

            def f():
                k.v_add_f32(tall, ts[0], ts[1])
                k.v_cmp_nge_f32("vcc", sTh, tall)
                k.s_cbranch_vccnz(cold)
                k.label(back)
                for qt in range(NQ):
                    k.v_add_f32(lsum[qt], lsum[qt], ts[qt])
                k.cold()
                k.label(cold)
                k.nop(16)
                tm_ = TE[0:4]
                dl = [PB[step % 2][i] for i in range(4)]
                for g in rowmax(step, dl, tm_):
                    g()
                for qt in range(NQ):
                    if step < 2:
                        k.v_add_f32(dl[qt], dl[qt], NM[4 * qt])
                    if BIAS:
                        k.v_add_f32(dl[qt], f32hex(BIAS), dl[qt])
                    k.v_max_f32(ts[qt], 0, dl[qt])
                for qt in range(NQ):
                    k.v_sub_f32(tm_[qt], 0, ts[qt])
                    k.v_exp_f32(tm_[qt], tm_[qt])
                for qt in range(NQ):
                    for e in range(4):
                        k.v_sub_f32(NM[4 * qt + e], NM[4 * qt + e], ts[qt])
                    k.v_mul_f32(lsum[qt], lsum[qt], tm_[qt])
                    for dt in range(8):
                        for e in range(4):
                            r_ = acc(dt, qt)[e]
                            k.v_mul_f32(r_, r_, tm_[qt])
                    for st2 in ([step + 1] if 2 <= step + 1 < 16 else []) + ([step] if step >= 2 else []):
                        Sn = SB[st2 % 2]
                        for kt in range(2):
                            for e in range(4):
                                i0 = (kt * NQ + qt) * 4 + e
                                k.v_sub_f32(Sn[i0], Sn[i0], ts[qt])
                for g in softmax(step):
                    g()
                k.nop(4)
                k.s_branch(back)
                k.pop()
            return f

        S.at(A0 - LA, sync(["K0"]), 0)
        for j in range(ND):
            S.at(A0 - LA + 2 + 6 * j, lambda j=j: dmaV(3, j), 3)

        def qcvt(ds, qt):
            fs = []
            for u in range(2):
                src = acc(2 * ds + u, qt)
                for e in range(4):
                    fs.append(lambda e=e, u=u, src=src: k.v_mul_f32(TE[4 * u + e], sC, src[e]))
                for h in range(2):
                    fs.append(lambda h=h, u=u: k.v_cvt_pk_bf16_f32(QB[(ds * NQ + qt) * 4 + 2 * u + h],
                                                                   TE[4 * u + 2 * h], TE[4 * u + 2 * h + 1]))
            return fs
        for ds in range(4):
            fs = []
            for qt in range(NQ):
                fs += qcvt(ds, qt)
            lo = A0 - KS + 2 * NQ * (ds + 1) + 2
            S.spread(fs, min(lo, A0 - 1), min(lo + 2 * NQ, A0))

        def at_v():
            atreg[0] = 1
            for tt in range(8):
                k.v_xor_b32(AT[tt], tt << 5, ATV0)
        S.at(A0 - LA + 1, at_v, 3)
        for kt in range(2):
            for ds in range(4):
                add_Sg(0, kt, ds)
        n0 = len(S.mf)
        for kt in range(2):
            for ds in range(4):
                add_Sg(1, kt, ds)
        mx = [PB[1][i] for i in range(4)]
        fs = rowmax(0, mx, TE[0:4])
        for qt in range(NQ):
            for e in range(4):
                fs.append(lambda qt=qt, e=e: k.v_sub_f32(NM[4 * qt + e], f32hex(-BIAS) if BIAS else 0, mx[qt]))
        fs += softmax(0)
        for qt in range(NQ):
            fs.append(lambda qt=qt: k.v_mov_b32(lsum[qt], ts[qt]))
        S.spread(fs, n0 + 2, n0 + 8 * NQ)

        tstart = {}
        for step in range(1, 16):
            n0 = len(S.mf)
            tstart[step] = n0
            if step + 1 < 16:
                sg = [(kt, ds) for kt in range(2) for ds in range(4)]
                add_Sg(step + 1, *sg[0])
                for i in range(8):
                    if i + 1 < 8:
                        add_Sg(step + 1, *sg[i + 1])
                    add_Pg(step - 1, i)
            else:
                for i in range(8):
                    add_Pg(step - 1, i)
            n1 = len(S.mf)
            S.spread(softmax(step), n0 + 2, n1)
            S.at(n1 - 1, check(step), 3)
            if step % 2 == 1:
                i = (step - 1) // 2
                tags = [f"K{i + 1}", f"V{i}"] if i + 1 < 8 else [f"V{i}"]
                iss = []
                if i + 3 < 8:
                    iss += [lambda i=i, j=j: dmaK(i + 3, j) for j in range(ND)]
                if 2 <= i and i + 2 < 8:
                    iss += [lambda i=i, j=j: dmaV(i + 2, j) for j in range(ND)]
                S.at(n0 - LA, sync(tags), 0)
                for q, f in enumerate(iss):
                    S.at(n0 - LA + 4 + 12 * q, f, 3)
        PGW = s(60 + 16, 4)
        S_real = S
        if not self.opt("side", 1):
            S = Sched()
        SJ.poff = 26 * 1024
        T_ = tstart
        if not WT0:
            S.spread(SJ.wt_setup(lane, jlim=1280), T_[1] - 14, T_[1] + 2, 4)
        for i in range(0 if WT0 else 4):
            S.at(T_[1] + 4 + 6 * i, SJ.wt_dma(i), 4)
            S.at(T_[3] + 6 + 4 * i, SJ.wt_read(i, first=(i == 0)), 4)
            S.at(T_[4] - 6 + 4 * i, SJ.wt_store(i), 4)
        S.spread(SJ.m4_setup(t, lane, SJ.PG), T_[4] + 12, T_[5] - LA, 4)
        for i in range(3):
            S.at(T_[5] - LA + 6 + 6 * i, SJ.m4_dma(i), 4)

        def epoch_all():
            self.get_epoch(v(34), vEp)
        S.at(T_[6], epoch_all, 4)
        S.at(T_[7] + 6, SJ.tr_addr(lane, 5, 10, 7), 4)
        for i in range(3):
            lo = T_[7] + 8 + 6 * i
            S.at(lo, SJ.tr_read(i * 8192, 32, tag="MD" if i == 0 else None), 4)
            S.at(lo + 4, SJ.mm(i, v(228 + 12 + 4 * i, 4)), 4)
        S.at(T_[8] + 4, SJ.m4_write(), 4)
        S.at(T_[9] - LA - 1, lambda: k.waitcnt(lgkm=0), 5)
        S.spread(SJ.m_final(lane), T_[9] - LA + 1, T_[9] + 6, 4)
        S.spread(SJ.u4_setup(t, lane, PGU), T_[9] + 8, T_[9] + 20, 4)
        for n in range(3):
            S.at(T_[9] + 22 + 6 * n, SJ.u3_dma(n), 4)
        S.at(T_[11] - LA - 1, lambda: k.need("SJ"), 5)

        def sig_side():
            skip = k.newlabel()
            k.s_cmp_lg_u32(sW, 0)
            k.s_cbranch_scc1(skip)
            k.push(If(lambda sc: sc["w0"]))
            k.s_mov_b32(sT[4], 0)
            self.flag_off(sT[5], F_S, sT[4], s(2))
            self.set_flag(sT[5], v(33), v(34))
            k.pop()
            k.label(skip)
        S.at(T_[11] - LA + 1, sig_side, 4)
        sa_ = [v(2), v(3), v(4), v(5)]
        sd_ = [v(232), v(233), v(234), v(235)]

        def setS():
            k.v_lshlrev_b32(sa_[0], FSH, lane)
            k.v_add_u32(sa_[0], hex(F_S * FPH), sa_[0])
            for i in range(1, 4):
                k.v_add_u32(sa_[i], hex((64 * i) << FSH), sa_[0])
        iss, chk = self.early_check(4, setS, sa_, sd_)
        S.at(T_[12] - 6, iss, 4)
        S.at(T_[13] - LA - 2, chk, 4)
        S.at(T_[13] - LA - 1, lambda: k.need("UD"), 5)
        S.at(T_[13] - LA + 1, SJ.u4_params(), 4)
        S.at(T_[14] - 6, SJ.tr_addr(lane, 7, 5, 3), 4)
        for i in range(5):
            lo = T_[14] - 4 + 5 * i
            S.at(lo, SJ.tr_read(i * 4096, 128), 4)
            S.at(lo + 4, SJ.mm(i, SJ.u4_B(i)), 4)
        S.at(T_[15] - 4, SJ.u4_store(), 4)
        S = S_real
        if not self.opt("side", 1):
            S.at(tstart[6], epoch_all, 4)
            S.at(tstart[11] - LA + 1, sig_side, 4)
        nf = len(S.mf)
        for dt in range(8):
            add_Pg(15, dt)
        fin = []
        for op in ("v_permlane16_swap_b32", "v_permlane32_swap_b32"):
            for qt in range(NQ):
                fin.append(lambda qt=qt: k.v_mov_b32(ts[qt], lsum[qt]))
            for qt in range(NQ):
                fin.append(lambda qt=qt, op=op: k.op(op, lsum[qt], ts[qt]))
            for qt in range(NQ):
                fin.append(lambda qt=qt: k.v_add_f32(lsum[qt], lsum[qt], ts[qt]))
        for qt in range(NQ):
            fin.append(lambda qt=qt: k.v_rcp_f32(lsum[qt], lsum[qt]))
        S.spread(fin, nf, nf + 5)
        OUT = [v(84 + 4 * i, 4) for i in range(8)]

        def epi(ds):
            fs = []
            for qt in range(NQ):
                o = OUT[ds * NQ + qt]
                for u in range(2):
                    src = acc(2 * ds + u, qt)
                    for e in range(4):
                        fs.append(lambda e=e, u=u, qt=qt, src=src: k.v_mul_f32(TE[4 * u + e], src[e], lsum[qt]))
                    for h in range(2):
                        fs.append(lambda h=h, u=u, o=o: k.v_cvt_pk_bf16_f32(o[2 * u + h], TE[4 * u + 2 * h],
                                                                            TE[4 * u + 2 * h + 1]))

                def st(o=o, qt=qt):
                    if qt == 0:
                        k.s_add_u32(sT[4], sOo, ds * 4096)
                    k.buffer_store_dwordx4(o, vl16, SO, sT[4], mods=f"offen offset:{qt * 1024} sc1", tag="OST")
                fs.append(st)
            return fs
        S.spread(epi(0), nf + 6, nf + 10)
        S.spread(epi(1), nf + 10, nf + 14)
        S.spread(epi(2), nf + 14, nf + 16)
        self.prio(1)
        S.emit()
        for f in epi(3):
            f()
        self.prio(0)
        self.stamp()
        self.flag_off(s(92), F_O, sRb, sHead)

    def skinny(self, op):
        k = self.k
        depth = 3
        NKS = 128 if op else 54
        cnts = [32] * 4 if op else [14, 14, 13, 13]
        NMAX, nmin = max(cnts), min(cnts)
        k.s_load_dwordx2(s(8, 2), s(0, 2), KA_X if op else KA_OUT)
        SA, SBf, SM, SX, SY, SST = s(12, 4), s(16, 4), s(20, 4), s(24, 4), s(32, 4), s(36, 4)
        sRb, sCb = s(41), s(42)
        sA, sB = s(43), s(44)
        sT = [s(46 + i) for i in range(8)]
        sE = [s(60 + i) for i in range(8)]
        lane, vo, tmp, m_, g_ = v(1), v(2), v(3), v(4), v(5)
        vlr, vrow, vx, vp = v(6), v(7), v(8), v(9)
        voB = [v(10 + j) for j in range(4)]
        vlw = [None, v(14), v(15), v(3)]
        ACC = v(16, 80)
        acc = lambda j, nt: ACC[(j * 5 + nt) * 4:(j * 5 + nt) * 4 + 4]
        FR = [v(96 + 36 * i, 36) for i in range(depth)]
        P1, P2, XR = v(204, 20), v(224, 20), v(244, 10)
        RB = [v(96 + 20 * i, 20) for i in range(3)]
        idle, endp = k.newlabel(), k.newlabel()
        act = lambda sc: sc["act"] != "idle"
        k.s_and_b32(sT[0], s(2), 7)
        k.s_lshr_b32(sT[1], s(2), 3)
        if self.opt("map2", 0):
            k.s_lshr_b32(sRb, sT[0], 1)
            k.s_lshl_b32(sRb, sRb, 3)
            k.s_and_b32(sT[2], sT[1], 7)
            k.s_add_u32(sRb, sRb, sT[2])
            k.s_and_b32(sCb, sT[0], 1)
            k.s_lshl_b32(sCb, sCb, 2)
            k.s_lshr_b32(sT[2], sT[1], 3)
            k.s_add_u32(sCb, sCb, sT[2])
        else:
            k.s_and_b32(sT[2], sT[1], 3)
            k.s_lshl_b32(sRb, sT[0], 2)
            k.s_add_u32(sRb, sRb, sT[2])
            k.s_lshr_b32(sCb, sT[1], 2)
        k.v_and_b32(lane, 63, v(0))
        k.v_lshlrev_b32(vo, 4, lane)
        if op:
            k.need("OST")
            self.signal(s(92), v(252), v(253))
        else:
            k.need("AST", "SJ")
            self.signal(s(92), v(252), v(253))
        self.stamp()
        for j in range(4):
            k.s_add_u32(sT[3], sW, j)
            k.s_and_b32(sT[3], sT[3], 3)
            k.s_lshl_b32(sT[3], sT[3], 10)
            k.v_add_u32(voB[j], sT[3], vo)
        k.s_and_b32(sT[4], sW, 3)
        if op:
            k.s_lshl_b32(sT[3], sT[4], 5)
        else:
            k.s_mul_i32(sT[3], sT[4], 14)
            k.s_cmp_eq_u32(sT[4], 3)
            k.s_cselect_b32(sT[4], 1, 0)
            k.s_sub_u32(sT[3], sT[3], sT[4])
        k.s_mul_i32(sA, sCb, NKS)
        k.s_add_u32(sA, sA, sT[3])
        k.s_mul_i32(sA, sA, 5120)
        k.s_mul_i32(sB, sRb, NKS)
        k.s_add_u32(sB, sB, sT[3])
        k.s_lshl_b32(sB, sB, 12)
        srd(k, SM, WS, SZ_MOD, WS_MOD)
        srd(k, SBf, WS, SZ_O if op else SZ_A2, WS_O if op else WS_A2)
        srd(k, SA, WS, SZ_WOT if op else SZ_WDT, WS_WOT if op else WS_WDT)

        def loadsA(i):
            F = FR[i % depth]
            for nt in range(4):
                k.buffer_load_dwordx4(F[16 + 4 * nt:20 + 4 * nt], vo, SA, sA, mods=f"offen offset:{nt * 1024} sc1")
            k.s_add_u32(sT[5], sA, 4096)
            k.buffer_load_dwordx4(F[32:36], vo, SA, sT[5], mods="offen sc1")
            k.s_add_u32(sA, sA, 5120)

        def loadsB(i):
            F = FR[i % depth]
            for j in range(4):
                k.buffer_load_dwordx4(F[4 * j:4 * j + 4], voB[j], SBf, sB, mods="offen sc1")
            k.s_add_u32(sB, sB, 4096)

        if not op:
            nod = k.newlabel()
            k.s_cmp_lt_u32(s(2), 216)
            k.s_cbranch_scc1(nod)
            k.push(If(lambda sc: not sc["p3"]))

            def setS():
                k.v_min_u32(v(248), 39, lane)
                k.v_lshlrev_b32(v(248), FSH, v(248))
                k.v_add_u32(v(248), hex(F_D * FPH), v(248))
            self.wait(setS, [v(248)], [v(252)], pw=4)
            k.pop()
            k.label(nod)
        pre = k.newlabel()
        k.s_cmp_ge_u32(sW, 4)
        k.s_cbranch_scc1(pre)
        k.push(If(act))
        for i in range(depth - 1):
            loadsA(i)
        k.pop()
        k.label(pre)

        def setD():
            k.s_lshr_b32(sT[4], sRb, 2)
            self.flag_off(sT[5], F_O if op else F_A, sT[4], 0)
            k.v_and_b32(v(252), 31, lane)
            if not op:
                k.v_min_u32(v(252), 26, v(252))
            k.v_lshlrev_b32(v(252), FSH, v(252))
            k.v_add_u32(v(252), sT[5], v(252))
        self.wait(setD, [v(252)], [v(254)], pw=4)
        self.stamp()
        k.s_cmp_ge_u32(sW, 4)
        k.s_cbranch_scc1(idle)
        k.push(If(act))
        for i in range(depth - 1):
            loadsB(i)
        k.waitcnt(lgkm=0)
        srd(k, SX, s(8, 2), SZ_H1)
        if op:
            srd(k, SY, WS, SZ_H1, WS_Y)
            srd(k, SST, WS, SZ_STATS, WS_STATS)
        k.v_and_b32(m_, 15, lane)
        k.v_lshrrev_b32(g_, 4, lane)
        k.s_mul_i32(sT[0], sCb, 320)
        k.v_lshlrev_b32(vp, 4, g_)
        k.s_add_u32(sE[6], sT[0], (2 if op else 5) * 2560)
        EL = []
        for nt in range(5):
            EL.append(lambda nt=nt: k.buffer_load_dwordx4(P1[4 * nt:4 * nt + 4], vp, SM, sE[6], mods=f"offen offset:{nt * 64} sc1"))
        k.s_lshl_b32(sT[2], sRb, 6)
        k.s_lshl_b32(sT[3], sW, 4)
        k.s_add_u32(sT[2], sT[2], sT[3])
        k.v_add_u32(vrow, sT[2], m_)
        k.v_mul_u32_u24(vx, 1280, vrow)
        k.v_lshl_add_u32(vx, g_, 3, vx)
        k.s_mul_i32(sE[0], sCb, 160)
        k.s_mul_i32(sE[1], sW, 5120)
        k.s_add_u32(sE[1], sE[1], hex(X1_LDS))
        vx1 = v(254)
        k.v_add_u32(vx1, sE[1], vo)
        if op:
            k.s_add_u32(sE[7], sT[0], 4 * 2560)
            for nt in range(5):
                EL.append(lambda nt=nt: k.buffer_load_dwordx4(P2[4 * nt:4 * nt + 4], vp, SM, sE[7], mods=f"offen offset:{nt * 64} sc1"))
            for nt in range(5):
                EL.append(lambda nt=nt: k.buffer_load_dwordx2(XR[2 * nt:2 * nt + 2], vx, SX, sE[0], mods=f"offen offset:{nt * 32}"))
            SMU = s(28, 4)
            srd(k, SMU, WS, 8192, WS_MU)
            k.v_lshlrev_b32(v(255), 2, vrow)
            EL.append(lambda: k.buffer_load_dword(v(4), v(255), SMU, 0, mods="offen sc1"))
            k.s_lshr_b32(sE[3], sT[2], 4)
            k.s_mul_i32(sE[3], sE[3], 20 * 1024)
            k.v_lshlrev_b32(vrow, 4, m_)
            k.s_lshr_b32(sE[5], sT[2], 4)
            k.s_lshl_b32(sE[5], sE[5], 10)
            k.s_lshr_b32(sT[1], sCb, 1)
            k.s_lshl_b32(sT[1], sT[1], 8)
            k.s_add_u32(sE[5], sE[5], sT[1])
            k.s_and_b32(sT[1], sCb, 1)
            k.s_lshl_b32(sT[1], sT[1], 3)
            k.s_add_u32(sE[5], sE[5], sT[1])
        else:
            for nt in range(5):
                EL.append(lambda nt=nt: k.ds_read_b128(P2[4 * nt:4 * nt + 4], vx1, mods=f"offset:{nt * 1024}"))
            k.v_mul_u32_u24(vrow, 1280, vrow)
            k.v_and_b32(tmp, 1, g_)
            k.v_lshl_add_u32(vrow, tmp, 5, vrow)
            k.v_lshrrev_b32(tmp, 1, g_)
            k.v_lshl_add_u32(vrow, tmp, 4, vrow)
        k.s_mul_i32(sT[7], sW, 15360)
        k.v_add_u32(vlr, sT[7], vo)
        for j in range(1, 4):
            k.s_add_u32(sT[7], sW, j)
            k.s_and_b32(sT[7], sT[7], 3)
            k.s_mul_i32(sT[7], sT[7], 15360)
            k.v_add_u32(vlw[j], sT[7], vo)

        def wr(n):
            j, nt = 1 + n // 5, n % 5
            k.ds_write_b128(vlw[j], acc(j, nt), mods=f"offset:{(3 - j) * 5120 + nt * 1024}")

        def compute(i, last=False, fill=()):
            F = FR[i % depth]
            order = [(nt, j) for nt in range(5) for j in range(4)]
            if last:
                order = [(nt, j) for j in (1, 2, 3, 0) for nt in range(5)]
            fill = list(fill)
            for n, (nt, j) in enumerate(order):
                c = acc(j, nt)
                k.op(MF, c, F[16 + 4 * nt:20 + 4 * nt], F[4 * j:4 * j + 4], 0 if i == 0 else c)
                if last and n >= 7:
                    wr(n - 7)
                if fill and n % 2 == 1:
                    fill.pop(0)()
            for f in fill:
                f()
            if last:
                for n in range(13, 15):
                    wr(n)

        def ldlist(i):
            F = FR[i % depth]
            fs = [lambda j=j: k.buffer_load_dwordx4(F[4 * j:4 * j + 4], voB[j], SBf, sB, mods="offen sc1") for j in range(4)]
            fs += [lambda nt=nt: k.buffer_load_dwordx4(F[16 + 4 * nt:20 + 4 * nt], vo, SA, sA,
                                                       mods=f"offen offset:{nt * 1024} sc1") for nt in range(4)]

            def lastf():
                k.s_add_u32(sT[5], sA, 4096)
                k.buffer_load_dwordx4(F[32:36], vo, SA, sT[5], mods="offen sc1")
                k.s_add_u32(sA, sA, 5120)
                k.s_add_u32(sB, sB, 4096)
            return fs + [lastf]

        def step(i, **kw):
            fill = []
            if i + depth - 1 < NMAX:
                if self.opt("ilv", 0):
                    fill = ldlist(i + depth - 1)
                else:
                    loadsB(i + depth - 1)
                    loadsA(i + depth - 1)
                if i + depth - 1 == NMAX - 1:
                    if self.opt("ilv", 0):
                        fill = fill + [lambda: [f() for f in EL]]
                    else:
                        for f in EL:
                            f()
            compute(i, fill=fill, **kw)

        if NMAX == nmin:
            for i in range(NMAX):
                step(i, last=(i == NMAX - 1))
        else:
            short, join = k.newlabel(), k.newlabel()
            for i in range(nmin - 1):
                step(i)
            k.s_cmp_ge_u32(sW, 2)
            k.s_cbranch_scc1(short)
            k.push(If(lambda sc: sc["act"] == "long"))
            compute(nmin - 1)
            compute(nmin, last=True)
            k.s_branch(join)
            k.pop()
            k.label(short)
            k.push(If(lambda sc: sc["act"] == "short"))
            compute(nmin - 1, last=True)
            k.pop()
            k.label(join)
        k.waitcnt(vm=0, lgkm=0)
        k.s_barrier()
        for d in range(3):
            for nt in range(5):
                k.ds_read_b128(RB[d][4 * nt:4 * nt + 4], vlr, mods=f"offset:{d * 5120 + nt * 1024}")
        OWN = ACC[0:20]
        XF = ACC[20:40]
        if op:
            for nt in range(5):
                for j in range(2):
                    unpack_bf16(k, XF[4 * nt + 2 * j], XF[4 * nt + 2 * j + 1], XR[2 * nt + j])
        for i in range(0, 20, 2):
            k.v_pk_add_f32(OWN[i:i + 2], OWN[i:i + 2], RB[0][i:i + 2])
        for i in range(0, 20, 2):
            k.v_pk_add_f32(RB[1][i:i + 2], RB[1][i:i + 2], RB[2][i:i + 2])
        for i in range(0, 20, 2):
            k.v_pk_add_f32(OWN[i:i + 2], OWN[i:i + 2], RB[1][i:i + 2])
        if op:
            for i in range(0, 20, 2):
                k.v_pk_fma_f32(OWN[i:i + 2], OWN[i:i + 2], P1[i:i + 2], XF[i:i + 2])
            Yv, YP = RB[1], RB[2]
            for nt in range(5):
                k.ds_write_b128(vx1, OWN[4 * nt:4 * nt + 4], mods=f"offset:{nt * 1024}")
            k.v_mov_b32(v(5), v(4))
            XC = RB[0]
            for i in range(0, 20, 2):
                k.v_pk_add_f32(XC[i:i + 2], OWN[i:i + 2], v(4, 2))
            OWN = XC
            for nt in range(5):
                for e in range(0, 4, 2):
                    i = 4 * nt + e
                    k.v_pk_mul_f32(Yv[i:i + 2], OWN[i:i + 2], P2[i:i + 2])
                for j in range(2):
                    k.v_cvt_pk_bf16_f32(YP[2 * nt + j], Yv[4 * nt + 2 * j], Yv[4 * nt + 2 * j + 1])
            k.s_mul_i32(sT[0], sCb, 5)
            k.s_lshr_b32(sT[1], sT[0], 1)
            k.s_lshl_b32(sT[1], sT[1], 10)
            k.s_add_u32(sT[1], sT[1], sE[3])
            odd, join2 = k.newlabel(), k.newlabel()
            k.s_bitcmp1_b32(sCb, 0)
            k.s_cbranch_scc1(odd)
            k.push(If(lambda sc: not sc["odd"]))
            k.buffer_store_dwordx4(YP[0:4], vo, SY, sT[1], mods="offen sc1")
            k.buffer_store_dwordx4(YP[4:8], vo, SY, sT[1], mods="offen offset:1024 sc1")
            k.buffer_store_dwordx2(YP[8:10], vo, SY, sT[1], mods="offen offset:2048 sc1")
            k.s_branch(join2)
            k.pop()
            k.label(odd)
            k.push(If(lambda sc: sc["odd"]))
            k.buffer_store_dwordx2(YP[0:2], vo, SY, sT[1], mods="offen offset:8 sc1")
            k.buffer_store_dwordx4(YP[2:6], vo, SY, sT[1], mods="offen offset:1024 sc1")
            k.buffer_store_dwordx4(YP[6:10], vo, SY, sT[1], mods="offen offset:2048 sc1")
            k.pop()
            k.label(join2)
            sm, tm = v(12), v(13)
            SP = v(12, 2)
            k.v_pk_add_f32(SP, OWN[0:2], OWN[2:4])
            for i in range(4, 20, 2):
                k.v_pk_add_f32(SP, SP, OWN[i:i + 2])
            k.v_add_f32(sm, sm, tm)
            swap_add(k, [sm], [tm], 16)
            swap_add(k, [sm], [tm], 32)
            k.v_mul_f32(sm, f32hex(1.0 / 80), sm)
            D = RB[1]
            MP = v(14, 2)
            k.v_sub_f32(v(14), 0, sm)
            k.v_sub_f32(v(15), 0, sm)
            for i in range(0, 20, 2):
                k.v_pk_add_f32(D[i:i + 2], OWN[i:i + 2], MP)
            k.v_pk_mul_f32(MP, D[0:2], D[0:2])
            for i in range(2, 20, 2):
                k.v_pk_fma_f32(MP, D[i:i + 2], D[i:i + 2], MP)
            m2, t2 = v(13), v(14)
            k.v_add_f32(m2, v(14), v(15))
            swap_add(k, [m2], [t2], 16)
            swap_add(k, [m2], [t2], 32)
            k.s_mov_b64("exec", "0xffff")
            k.buffer_store_dwordx2(v(12, 2), vrow, SST, sE[5], mods="offen sc1")
            k.s_mov_b64("exec", -1)
            k.waitcnt(vm=0, lgkm=0)
            k.s_branch(endp)
        else:
            YP = RB[2]
            for nt in range(5):
                for e in range(0, 4, 2):
                    i = 4 * nt + e
                    k.v_pk_fma_f32(OWN[i:i + 2], OWN[i:i + 2], P1[i:i + 2], P2[i:i + 2])
                for j in range(2):
                    k.v_cvt_pk_bf16_f32(YP[2 * nt + j], OWN[4 * nt + 2 * j], OWN[4 * nt + 2 * j + 1])
                if nt in (1, 3):
                    b0 = 2 * (nt - 1)
                    k.v_permlane16_swap_b32(YP[b0], YP[b0 + 2])
                    k.v_permlane16_swap_b32(YP[b0 + 1], YP[b0 + 3])
                    k.buffer_store_dwordx4(YP[b0:b0 + 4], vrow, SX, sE[0], mods=f"offen offset:{(nt - 1) * 32}")
                elif nt == 4:
                    k.buffer_store_dwordx2(YP[8:10], vx, SX, sE[0], mods="offen offset:128")
            if self.opt("st", 0):
                k.waitcnt(vm=0)
                self.stamp()
            k.s_endpgm()
        k.pop()
        k.label(idle)
        k.push(If(lambda sc: sc["act"] == "idle"))
        if op and self.opt("g0", 1):
            nog = k.newlabel()
            k.s_load_dwordx4(s(8, 4), s(0, 2), KA_WG)
            k.s_and_b32(s(12), s(2), 7)
            k.s_mul_i32(s(12), s(12), 27)
            k.s_lshr_b32(s(13), s(2), 3)
            k.s_add_u32(s(12), s(12), s(13))
            k.s_lshr_b32(s(12), s(12), 3)
            k.s_lshl_b32(s(12), s(12), 7)
            k.v_lshrrev_b32(v(4), 3, lane)
            k.v_lshrrev_b32(v(5), 4, lane)
            k.v_lshlrev_b32(v(5), 1, v(5))
            k.v_and_b32(v(6), 7, lane)
            k.v_xor_b32(v(6), v(6), v(5))
            k.s_lshl_b32(s(13), sW, 3)
            k.v_add_u32(v(4), s(13), v(4))
            k.v_mul_u32_u24(v(4), 3456, v(4))
            k.v_lshl_add_u32(v(6), v(6), 4, v(4))
            k.v_subrev_u32(v(7), 32 * 3456, v(6))
            k.s_lshl_b32(s(13), sW, 10)
            k.waitcnt(lgkm=0)
            srd(k, s(16, 4), s(8, 2), 640 * 3456)
            srd(k, s(20, 4), s(10, 2), 640 * 3456)
            k.s_barrier()
            k.s_cmp_ge_u32(s(2), 216)
            k.s_cbranch_scc1(nog)
            k.push(If(lambda sc: sc["p3"]))
            for c in range(4):
                k.s_add_u32(s(14), s(12), hex(c * 64 * 3456))
                for j in range(2):
                    for h in range(2):
                        k.s_add_u32("m0", s(13), hex((4 + c) * SLOT + j * 8192 - h * 4096))
                        k.buffer_load_dwordx4(v(6 + h), s(16 + 4 * j, 4), s(14), mods="offen lds", tag=f"G{c}")
            k.pop()
            k.label(nog)
        elif op:
            k.s_barrier()
        else:
            k.s_endpgm()
        k.pop()
        if op:
            k.label(endp)
            k.s_and_b32(sT[4], s(2), 7)
            k.s_lshr_b32(sT[6], s(2), 3)
            self.flag_off(s(92), F_Y, sT[4], sT[6])
            self.signal(s(92), v(252), v(253))
            self.stamp()

    def p3(self):
        k = self.k
        LA = self.opt("k3_la", 12)
        LEAD = self.opt("k3_lead", 3)
        XD = 2 * LEAD + 2
        NQ = 2
        KS, CH = 8 * NQ, 16 * NQ
        SC = 2
        G0 = self.opt("g0", 1)
        gslot = (lambda c: (c + 4) % 8) if G0 else (lambda c: c % 8)
        GI = list(range(4, 7)) if G0 else list(range(LEAD))
        skip, endl = k.newlabel(), k.newlabel()
        k.s_lshr_b32(s(3), s(2), 3)
        k.s_cmp_ge_u32(s(3), 27)
        k.s_cbranch_scc1(skip)
        k.push(If(lambda sc: sc["p3"]))
        k.s_load_dwordx4(s(8, 4), s(0, 2), KA_WG)
        SG, SU, SY, SUV, SST, SA = s(12, 4), s(16, 4), s(20, 4), s(24, 4), s(28, 4), s(32, 4)
        sFb, sRb, sWb = s(37), s(38), s(39)
        sT = [s(40 + i) for i in range(8)]
        sWo, sXo, sNL, sXb, sAo, sN2 = s(48), s(49), s(50), s(51), s(52), s(53)
        t = v(0)
        lane, tmpa, tmpb, l4 = v(1), v(2), v(3), v(4)
        voD, vl16, aU = v(5), v(6), v(7)
        rstd = [v(10 + i) for i in range(NQ)]
        nmr = [v(14 + i) for i in range(NQ)]
        AT = [v(18 + i) for i in range(4)]
        ACC = v(24, 64)
        acc = lambda tt, qt: ACC[(tt * NQ + qt) * 4:(tt * NQ + qt) * 4 + 4]
        UB = v(88, 64)
        NWF = 8 if not self.opt("st3", 0) else 7
        WF = [v(152 + 4 * i, 4) for i in range(NWF)]
        XF = [v(184 + 8 * i, 8) for i in range(XD)]
        OUTB = [v(248 + 4 * i, 4) for i in range(2)] if not self.opt("st3", 0) else [v(248, 4), v(180, 4)]
        fr = [i for i in range(XD) if i not in [x % XD for x in range(16, 20)]]
        E = [XF[fr[0]][i] for i in range(8)] + [XF[fr[1]][i] for i in range(8)]
        E0 = [v(22), v(23)]
        k.v_and_b32(lane, 63, t)
        k.s_and_b32(sT[0], s(2), 7)
        k.s_mul_i32(sT[0], sT[0], 27)
        k.s_add_u32(sT[0], sT[0], s(3))
        k.s_lshr_b32(sFb, sT[0], 3)
        k.s_and_b32(sRb, sT[0], 7)
        k.v_lshrrev_b32(l4, 4, lane)
        k.v_lshlrev_b32(vl16, 4, lane)
        k.s_lshl_b32(sWb, sW, 10)
        k.s_lshl_b32(sT[0], sRb, 3)
        k.s_add_u32(sT[0], sT[0], sW)
        k.s_mul_i32(sXb, sT[0], 2 * 20 * 1024)
        k.v_lshrrev_b32(tmpa, 3, lane)
        k.v_lshlrev_b32(tmpb, 1, l4)
        k.v_and_b32(voD, 7, lane)
        k.v_xor_b32(voD, voD, tmpb)
        k.s_lshl_b32(sT[2], sW, 3)
        k.v_add_u32(tmpa, sT[2], tmpa)
        k.v_mul_u32_u24(tmpa, 3456, tmpa)
        k.v_lshl_add_u32(voD, voD, 4, tmpa)
        srd(k, SY, WS, SZ_H1, WS_Y)
        srd(k, SUV, WS, SZ_UP, WS_UP)
        srd(k, SST, WS, SZ_STATS, WS_STATS)
        srd(k, SA, WS, SZ_A2, WS_A2)
        k.s_lshl_b32(sWo, sFb, 7)
        k.s_lshl_b32(sT[5], sT[0], 11)
        k.waitcnt(lgkm=0)
        srd(k, SG, s(8, 2), 640 * 3456)
        srd(k, SU, s(10, 2), 640 * 3456)

        def dmaW(c, j):
            k.s_add_u32(sT[3], sWo, hex(c * 64 * 3456))
            k.s_add_u32("m0", sWb, hex(gslot(c) * SLOT + j * 8192))
            k.buffer_load_dwordx4(voD, SU if j else SG, sT[3], mods="offen lds", tag=f"G{c}")

        def loadX(ks, qt):
            k.s_add_u32(sXo, sXb, hex((qt * 20 + ks) * 1024))
            k.buffer_load_dwordx4(XF[ks % XD][4 * qt:4 * qt + 4], vl16, SY, sXo, mods="offen sc1")

        UT = [v(104 + 4 * i, 4) for i in range(4)]
        nod, nod2 = k.newlabel(), k.newlabel()
        k.s_cmp_eq_u32(sW, 4)
        k.s_cbranch_scc1(nod)
        k.push(If(lambda sc: sc["w"] != 4))
        for c in GI:
            for j in range(2):
                dmaW(c, j)
        k.s_cmp_lg_u32(sW, 5)
        k.s_cbranch_scc1(nod2)
        k.push(If(lambda sc: sc["w"] == 5))
        k.v_subrev_u32(tmpa, 8 * 3456, voD)
        for c in GI:
            for j in range(2):
                k.s_add_u32(sT[3], sWo, hex(c * 64 * 3456))
                k.s_add_u32("m0", sWb, hex((gslot(c) * SLOT + j * 8192 - 1024) & 0xffffffff))
                k.buffer_load_dwordx4(tmpa, SU if j else SG, sT[3], mods="offen lds", tag=f"G{c}")
        k.pop()
        k.label(nod2)
        k.pop()
        k.label(nod)
        k.s_mov_b32(sNL, f32hex(-LOG2E))
        k.s_mov_b32(sN2, f32hex(-1.0 / LOG2E))
        k.v_lshrrev_b32(tmpa, 2, lane)
        k.v_bfe_u32(tmpb, lane, 3, 2)
        k.v_lshlrev_b32(tmpb, 5, tmpb)
        k.v_lshl_add_u32(tmpb, tmpa, 7, tmpb)
        k.v_and_b32(tmpa, 3, lane)
        k.v_lshl_add_u32(AT[0], tmpa, 3, tmpb)
        for tt in range(1, 4):
            k.v_xor_b32(AT[tt], tt << 5, AT[0])
        k.v_lshlrev_b32(aU, 4, l4)
        k.v_add_u32(aU, hex(8 * SLOT), aU)
        k.s_lshr_b32(sT[1], sT[0], 1)
        k.s_mul_i32(sAo, sT[1], 54 * 4096)
        k.s_and_b32(sT[1], sT[0], 1)
        k.s_lshl_b32(sT[1], sT[1], 11)
        k.s_add_u32(sAo, sAo, sT[1])
        k.s_lshl_b32(sT[1], sFb, 13)
        k.s_add_u32(sAo, sAo, sT[1])

        def setY():
            if self.opt("map2", 0):
                k.s_lshr_b32(sT[6], sRb, 1)
                k.s_lshl_b32(sT[6], sT[6], 7)
                k.s_and_b32(sT[7], sRb, 1)
                k.s_lshl_b32(sT[7], sT[7], 2)
                k.s_add_u32(sT[6], sT[6], sT[7])
                k.v_and_b32(v(252), 1, lane)
                k.v_lshlrev_b32(v(252), 6, v(252))
                k.v_bfe_u32(v(253), lane, 1, 2)
                k.v_add_u32(v(252), v(252), v(253))
                k.v_bfe_u32(v(253), lane, 3, 2)
                k.v_lshl_add_u32(v(252), v(253), 3, v(252))
                k.v_add_u32(v(252), sT[6], v(252))
                k.v_lshlrev_b32(v(252), FSH, v(252))
                k.v_add_u32(v(252), hex(F_Y * FPH), v(252))
            else:
                self.flag_off(sT[6], F_Y, sRb, 0)
                k.v_and_b32(v(252), 31, lane)
                k.v_lshlrev_b32(v(252), FSH, v(252))
                k.v_add_u32(v(252), sT[6], v(252))
            k.s_lshl_b32(sT[7], sFb, 2)
            k.v_and_b32(v(253), 3, lane)
            k.v_add_u32(v(253), sT[7], v(253))
            k.v_bfe_u32(v(254), lane, 2, 1)
            k.v_mul_u32_u24(v(254), 108, v(254))
            k.v_add_u32(v(253), v(253), v(254))
            k.v_and_b32(v(254), 7, v(253))
            k.v_lshrrev_b32(v(253), 3, v(253))
            k.v_lshl_add_u32(v(253), v(254), 6, v(253))
            k.v_lshlrev_b32(v(253), FSH, v(253))
            k.v_add_u32(v(253), hex(F_Y * FPH), v(253))
            k.v_cmp_lt_u32("vcc", 31, lane)
            k.v_cndmask_b32(v(252), v(252), v(253), "vcc")
        HD = self.opt("hd", 1)
        if HD:
            k.need("G0", "G1")
        self.wait(setY, [v(252)], [v(254)], pw=4)
        self.stamp()
        late = []

        def extras():
            for qt in range(NQ):
                k.buffer_load_dwordx4(UB[4 * qt:4 * qt + 4], vl16, SST, sT[5], mods=f"offen offset:{qt * 1024} sc1")
            k.s_lshl_b32(sT[4], sFb, 10)
            for q in range(4):
                k.buffer_load_dwordx4(UT[q], vl16, SUV, sT[4], mods="offen sc1")
                k.s_add_u32(sT[4], sT[4], 27 * 1024)
        for ks in range(2 * LEAD):
            for qt in range(NQ):
                if HD and ks >= 2:
                    late.append(lambda ks=ks, qt=qt: loadX(ks, qt))
                else:
                    loadX(ks, qt)
            if ks == 1 and not HD:
                extras()
        k.v_add_u32(v(8), hex(8 * SLOT), vl16)

        def sync(tags):
            def f():
                k.need(*tags)
                k.s_barrier()
                if self.opt("st3", 0):
                    self.o["st"] = 2
                    self.stamp2()
                    self.o["st"] = 1
            return f

        S = Sched()
        atreg = [0]

        def at_shift(newreg):
            def f():
                d = (newreg - atreg[0]) * 4 * SLOT
                atreg[0] = newreg
                for tt in range(4):
                    if d > 0:
                        k.v_add_u32(AT[tt], hex(d), AT[tt])
                    else:
                        k.v_subrev_u32(AT[tt], hex(-d), AT[tt])
            return f

        order = [(ks, tt) for ks in range(16) for tt in range(8)]
        for ft in range(4):
            order += [(ks, tt) for ks in range(16, 20) for tt in (ft, 4 + ft)]

        def wread(G):
            ks, tt = order[G]
            c, sidx = divmod(ks, 2)
            reg, off = divmod(gslot(c) * SLOT, 4 * SLOT)
            dst = WF[G % NWF]

            def f():
                assert atreg[0] == reg
                for rd in range(2):
                    k.ds_read_b64_tr_b16(dst[2 * rd:2 * rd + 2], AT[tt & 3],
                                         mods=f"offset:{off + (tt >> 2) * 8192 + sidx * 4096 + rd * 2048}")
            return f

        for G in range(160):
            ks, tt = order[G]
            for qt in range(NQ):
                S.add_mfma(lambda G=G, ks=ks, tt=tt, qt=qt: k.op(
                    MF, acc(tt, qt), WF[G % NWF], XF[ks % XD][4 * qt:4 * qt + 4], 0 if ks == 0 else acc(tt, qt)))
            S.at(max(NQ * G - LA, NQ * (G - NWF) + NQ - 1), wread(G), 1)
        if G0:
            S.at(-1, at_shift(1), -1)
        for c, reg in (((4, 0), (8, 1)) if G0 else ((4, 1), (8, 0))):
            S.at(CH * c - LA, at_shift(reg), 0.5)
        if not HD:
            S.at(-1, sync(["G0"]), 0)
        else:
            for i, f in enumerate(late):
                S.at(-1 if i < 4 else i - 4, f, 3)
            S.at(5, extras, 3)

        def uts():
            for e in range(0, 4, 2):
                k.v_pk_add_f32(UT[0][e:e + 2], UT[0][e:e + 2], UT[1][e:e + 2])
                k.v_pk_add_f32(UT[2][e:e + 2], UT[2][e:e + 2], UT[3][e:e + 2])
                k.v_pk_add_f32(UT[0][e:e + 2], UT[0][e:e + 2], UT[2][e:e + 2])
            k.ds_write_b128(v(8), UT[0])
        S.at(CH + 12, uts, 1)

        def setDd():
            k.v_min_u32(tmpa, 39, lane)
            k.v_lshlrev_b32(tmpa, FSH, tmpa)
            k.v_add_u32(tmpa, hex(F_D * FPH), tmpa)
        iss, chk = self.early_check(4, setDd, [tmpa], [tmpb])
        S.at(CH * 6 + 20, iss, 4)
        S.at(CH * 8 - LA - 1, chk, 4)
        S.at(CH * 2 - LA - 1, lambda: k.waitcnt(lgkm=0), 5)
        for c in range(2 if HD else 1, 9):
            if c % 2 == 1 and c > 1:
                continue
            tags = [f"G{c}"] + ([f"G{c + 1}"] if c > 1 else [])
            S.at(CH * c - LA, sync(tags), 0)
        for c in range(0, 10 - LEAD):
            cc = c + LEAD
            for j in range(2):
                if G0:
                    if 7 <= c + 5 <= 9:
                        S.at(CH * c + 2 + 16 * j, lambda c=c, j=j: dmaW(c + 5, j), 3)
                else:
                    S.at(CH * c + 2 + 16 * j, lambda cc=cc, j=j: dmaW(cc, j), 3)
            for h in range(2):
                for qt in range(NQ):
                    S.at(CH * c + KS * h + 6 + 6 * qt, lambda ks=2 * cc + h, qt=qt: loadX(ks, qt), 3)
        fs = []
        mean = [UB[8 + qt] for qt in range(NQ)]
        tm = [UB[12 + qt] for qt in range(NQ)]

        def swp(x):
            for op in ("v_permlane16_swap_b32", "v_permlane32_swap_b32"):
                for qt in range(NQ):
                    fs.append(lambda qt=qt: k.v_mov_b32(tm[qt], x[qt]))
                for qt in range(NQ):
                    fs.append(lambda qt=qt, op=op: k.op(op, x[qt], tm[qt]))
                for qt in range(NQ):
                    fs.append(lambda qt=qt: k.v_add_f32(x[qt], x[qt], tm[qt]))
        for qt in range(NQ):
            fs.append(lambda qt=qt: k.v_add_f32(mean[qt], UB[4 * qt], UB[4 * qt + 2]))
        swp(mean)
        for qt in range(NQ):
            b_ = UB[4 * qt:4 * qt + 4]
            fs.append(lambda qt=qt: k.v_mul_f32(mean[qt], 0.125, mean[qt]))
            fs.append(lambda qt=qt, b_=b_: k.v_sub_f32(b_[0], b_[0], mean[qt]))
            fs.append(lambda qt=qt, b_=b_: k.v_sub_f32(b_[2], b_[2], mean[qt]))
            fs.append(lambda qt=qt, b_=b_: k.v_mul_f32(b_[0], b_[0], b_[0]))
            fs.append(lambda qt=qt, b_=b_: k.v_fmac_f32(b_[0], b_[2], b_[2]))
            fs.append(lambda qt=qt, b_=b_: k.v_add_f32(rstd[qt], b_[1], b_[3]))
            fs.append(lambda qt=qt, b_=b_: k.v_fmac_f32(rstd[qt], f32hex(80.0), b_[0]))
        swp(rstd)
        for qt in range(NQ):
            fs.append(lambda qt=qt: k.v_mov_b32(tm[qt], f32hex(1e-5)))
            fs.append(lambda qt=qt: k.v_fmac_f32(tm[qt], f32hex(1.0 / 640), rstd[qt]))
            fs.append(lambda qt=qt: k.v_rsq_f32(rstd[qt], tm[qt]))
            fs.append(lambda qt=qt: k.v_mul_f32(nmr[qt], mean[qt], rstd[qt]))
            fs.append(lambda qt=qt: k.v_sub_f32(nmr[qt], 0, nmr[qt]))
        S.spread(fs, CH * SC, CH * (SC + 2) - 4)
        for ft in range(4):
            for vec in range(4):
                S.at(CH * (SC + 2) + 2 + 2 * (4 * ft + vec), lambda ft=ft, vec=vec: k.ds_read_b128(
                    UB[16 * ft + 4 * vec:16 * ft + 4 * vec + 4], aU, mods=f"offset:{ft * 256 + vec * 64}"), 1)
        dn = E0[0]
        fs = [lambda: k.v_sub_f32(dn, nmr[0], nmr[1])]
        for ft in range(4):
            for m in range(2):
                for e in range(4):
                    u1, u2 = UB[16 * ft + 8 * m + e], UB[16 * ft + 8 * m + 4 + e]
                    fs.append(lambda u1=u1, u2=u2: k.v_fma_f32(u2, nmr[1], u1, u2))
                    fs.append(lambda u1=u1, u2=u2: k.v_fma_f32(u1, dn, u1, u2))
                    cst = sNL if m == 0 else sN2
                    fs.append(lambda u1=u1, cst=cst: k.v_mul_f32(u1, cst, u1))
                    fs.append(lambda u2=u2, cst=cst: k.v_mul_f32(u2, cst, u2))
        rs2 = [v(12), v(13)]
        for qt in range(NQ):
            fs.append(lambda qt=qt: k.v_mul_f32(rs2[qt], sN2, rstd[qt]))
            fs.append(lambda qt=qt: k.v_mul_f32(rstd[qt], sNL, rstd[qt]))
        S.spread(fs, CH * (SC + 3) + 4, CH * (SC + 6))

        def epi(fts):
            fs = []
            for qt in range(NQ):
                o = OUTB[qt]
                for ft in fts:
                    u = ft & 1
                    G_, U_ = acc(ft, qt), acc(4 + ft, qt)
                    t1 = lambda m, e, ft=ft, qt=qt: UB[16 * ft + 8 * m + 4 * qt + e]
                    Eg = [E[8 * qt + 4 * u + e] for e in range(4)]
                    for e in range(4):
                        fs.append(lambda e=e, G_=G_, qt=qt, t1=t1: k.v_fma_f32(G_[e], G_[e], rstd[qt], t1(0, e)))
                    for e in range(4):
                        fs.append(lambda e=e, Eg=Eg, G_=G_: k.v_exp_f32(Eg[e], G_[e]))
                    for e in range(4):
                        fs.append(lambda e=e, U_=U_, qt=qt, t1=t1: k.v_fma_f32(U_[e], U_[e], rs2[qt], t1(1, e)))
                    for e in range(4):
                        fs.append(lambda e=e, Eg=Eg: k.v_add_f32(Eg[e], 1.0, Eg[e]))
                    for e in range(4):
                        fs.append(lambda e=e, Eg=Eg: k.v_rcp_f32(Eg[e], Eg[e]))
                    for e in range(4):
                        fs.append(lambda e=e, G_=G_, U_=U_: k.v_mul_f32(G_[e], G_[e], U_[e]))
                    for e in range(4):
                        fs.append(lambda e=e, G_=G_, Eg=Eg: k.v_mul_f32(G_[e], G_[e], Eg[e]))
                    for h in range(2):
                        fs.append(lambda h=h, u=u, o=o, G_=G_: k.v_cvt_pk_bf16_f32(o[2 * u + h], G_[2 * h], G_[2 * h + 1]))
                    if u == 1:
                        def st(o=o, qt=qt, ft=ft):
                            k.s_add_u32(sT[4], sAo, (ft >> 1) * 4096)
                            k.buffer_store_dwordx4(o, vl16, SA, sT[4], mods=f"offen offset:{qt * 1024} sc1", tag="AST")
                        fs.append(st)
            return fs
        for ft in range(3):
            S.spread(epi([ft]), (128 + 8 * (ft + 1)) * NQ + 2, (128 + 8 * (ft + 2)) * NQ)
        self.prio(1)
        S.emit()
        if self.opt("st3", 0):
            self.o["st"] = 2
            self.stamp2()
            self.o["st"] = 1
        for f in epi([3]):
            f()
        self.prio(0)
        self.flag_off(s(92), F_A, sRb, sFb)
        k.s_branch(endl)
        k.pop()
        k.label(skip)
        k.push(If(lambda sc: not sc["p3"]))
        SJ = SideJobs(k, sW, 8, 60, 16, 0, WS, sc1=True)
        k.s_load_dwordx2(SJ.PW[0:2], s(0, 2), KA_WO)
        k.s_load_dwordx2(SJ.PW[2:4], s(0, 2), KA_WD)
        k.v_and_b32(v(1), 63, v(0))
        k.s_sub_u32(s(40), s(2), 216)
        k.waitcnt(lgkm=0)
        for rep in range(2):
            for f in SJ.wt_setup(v(1), rep, 2, jbase=1280, wg=s(40)):
                f()
            for i in range(4):
                SJ.wt_dma(i)()
            for i in range(4):
                SJ.wt_read(i, first=(i == 0))()
            for i in range(4):
                SJ.wt_store(i)()
        k.s_mov_b32(s(41), 0)
        self.flag_off(s(92), F_D, s(41), s(40))
        k.pop()
        k.label(endl)

    def build(self):
        k = self.k
        k.s_cmp_ge_u32(s(2), 256)
        k.s_cbranch_scc1("L_done")
        self.p01()
        self.skinny(True)
        self.p3()
        self.skinny(False)
        k.label("L_done")
        k.s_endpgm()
        k.vgpr, k.accum, k.sgpr = 256, 256, 102
        k.launch = dict(grid=256, block=512, lds=160 * 1024)
        return k


if __name__ == "__main__":
    import sys, gen
    opts = dict(a_.split("=") for a_ in sys.argv[2:] if "=" in a_)
    k = Mega(opts).build()
    open(sys.argv[1], "w").write(gen.build([k]))
    print(k.name, k.ntrace[:20], k.max_regs())
```
